```python
import torch

def _softmax(x, axis=-1):
    return torch.softmax(x, dim=axis)
def _gelu(x):
    return torch.nn.functional.gelu(x, approximate="tanh")
def _silu(x):
    return torch.nn.functional.silu(x)
def _sigmoid(x):
    return torch.sigmoid(x)
def _layernorm(x, axis=-1, eps=1e-5):
    m = x.mean(dim=axis, keepdim=True)
    v = x.var(dim=axis, keepdim=True, unbiased=False)
    return (x - m) / torch.sqrt(v + eps)
def _scatter_add(tgt, idx, src, axis=0):
    return tgt.clone().index_add_(axis, idx, src)
def _segment_sum(src, seg, n):
    out = torch.zeros((n,) + src.shape[1:], dtype=src.dtype)
    return out.index_add_(0, seg, src)
def _pad(x, pw):
    flat = tuple(v for pair in reversed(pw) for v in pair)
    return torch.nn.functional.pad(x, flat)

kernel_name = 'standalone__groupnorm__sampling'

def setup_inputs():

    _w = (lambda a: (lambda t: t.to(torch.bfloat16) if t.is_floating_point() else t)(torch.as_tensor(a)))
    B = 16
    G = 32
    cpg = max(1, 512 // G)
    C = G * cpg
    H, W = 32, 32
    return {
        "x": _w(abs((lambda *s: torch.randn(*s, dtype=torch.bfloat16) * 0.05)(B, C, H, W))),
        "g": _w((lambda *s: torch.randn(*s, dtype=torch.bfloat16) * 0.05)(C) + 1.0),
        "b": _w((lambda *s: torch.randn(*s, dtype=torch.bfloat16) * 0.4)(C)),
    }

def reference(x, g, b):
    G = 32
    B, C, H, W = x.shape[0], x.shape[1], x.shape[2], x.shape[3]
    xr = x.reshape(B, G, C // G, H, W)
    mu = xr.mean(axis=(2, 3, 4), keepdims=True)
    var = ((xr - mu) ** 2).mean(axis=(2, 3, 4), keepdims=True)
    xn = (xr - mu) / torch.sqrt(var + 1e-5)
    xn = xn.reshape(B, C, H, W)
    return xn * g[None, :, None, None] + b[None, :, None, None]
```

```python
import sys, argparse

HEADER = """; Kernarg layout for this problem (48 bytes, ptrs only, base s[0:1]):
;   offset   0: d_in[0] x  shape=(16, 512, 32, 32) dtype=bfloat16 strides=(1048576, 2048, 64, 2) contiguous=True
;   offset   8: d_in[1] g  shape=(512,) dtype=bfloat16 strides=(2,) contiguous=True
;   offset  16: d_in[2] b  shape=(512,) dtype=bfloat16 strides=(2,) contiguous=True
"""
NAME = "standalone__groupnorm__sampling_kernel"
POL = {'-': '', 'n': 'nt', 's': 'sc0 sc1', 'a': 'sc1', 'w': 'sc0', 'S': 'sc0 sc1 nt', 'A': 'sc1 nt', 'W': 'sc0 nt'}

def gen(W=4, layout=0, ld='-', st='n', num=2, gmap=0, split=-1, thr=-1, thrw=0, strev=0, prof=0, ldB=None, stB=None, early=1, scpre=0, scnop=0, sepsh=2, wb=0, wbpol='sc1', vg=0):
    NL = 32 // W
    ld = (ld * NL)[:NL] if len(ld) == 1 else ld
    st = (st * NL)[:NL] if len(st) == 1 else st
    assert len(ld) == NL and len(st) == NL
    lgW = W.bit_length() - 1
    if layout == 0:
        woff = 1024 * NL; ioff = [1024 * i for i in range(NL)]
    elif layout == 1:
        woff = 1024; ioff = [1024 * W * i for i in range(NL)]
    elif layout == 2:
        woff = 2048 if W <= 4 else 1024
        if W == 4: ioff = [(i & 3) * 8192 + (i >> 2) * 1024 for i in range(NL)]
        elif W == 8: ioff = [i * 8192 for i in range(NL)]
        else: raise Exception
    elif layout == 3:
        assert W == 4
        woff = 2048; ioff = [(i >> 1) * 8192 + (i & 1) * 1024 for i in range(NL)]
    wins = sorted(set(o // 8192 for o in ioff))
    cslots = sorted(set(o >> 11 for o in ioff))
    NC = len(cslots)
    two = split >= 0
    nt = 64 * W * (2 if two else 1)
    grid = 256 if two else 512
    L = []; A = L.append
    A(HEADER.rstrip())
    nred = 2 if num == 3 else 1
    lds = W * 8 * (2 if two else 1) * nred
    A(f"; @launch grid=({grid},1,1) block=({nt},1,1) lds={lds}")
    A('.amdgcn_target "amdgcn-amd-amdhsa--gfx950"')
    A(".text"); A(f".globl {NAME}"); A(".p2align 8"); A(f".type {NAME},@function"); A(f"{NAME}:")
    AD = 2
    LW, LR = 6, 7
    X = 8
    F = X + 4 * NL
    S1 = F + 8 * NL
    S2 = S1 + 4
    ONE = S2 + 4
    SC = ONE + 4
    NV = SC + 2 * NC
    SH = NV
    if sepsh: NV += 2 * NC
    NV = (NV + 3) // 4 * 4
    T = X
    if 2 * W > 4 * NL:
        T = NV; NV += 2 * W
    if prof:
        A("    s_memrealtime s[40:41]")
        A("    s_load_dwordx2 s[60:61], s[0:1], 40")
    A("    s_load_dwordx8 s[4:11], s[0:1], 0")
    A(f"    s_cmp_ge_u32 s2, {grid}")
    A("    s_cbranch_scc1 L_end")
    A("    v_lshrrev_b32 v1, 6, v0")
    A("    v_and_b32 v0, 63, v0")
    A("    v_lshlrev_b32 v2, 4, v0")
    A("    v_readfirstlane_b32 s3, v1")
    A(f"    v_lshlrev_b32 v{LW}, 3, v1")
    if two:
        A(f"    s_lshr_b32 s14, s3, {lgW}")
        A(f"    s_and_b32 s15, s3, {W-1}")
        A("    s_lshl_b32 s13, s14, 8")
        A("    s_or_b32 s12, s2, s13")
        gsrc = "s12"
    else:
        A("    s_mov_b32 s15, s3")
        gsrc = "s2"
    if gmap == 1:
        A(f"    s_lshr_b32 s13, {gsrc}, 8"); A(f"    s_and_b32 s12, {gsrc}, 255"); A("    s_lshl_b32 s12, s12, 1"); A("    s_or_b32 s12, s12, s13")
    elif gmap == 2:
        A(f"    s_lshr_b32 s13, {gsrc}, 3"); A(f"    s_and_b32 s12, {gsrc}, 7"); A("    s_lshl_b32 s12, s12, 6"); A("    s_or_b32 s12, s12, s13")
    elif gmap == 3:
        A(f"    s_lshr_b32 s13, {gsrc}, 2"); A("    s_and_b32 s13, s13, 64"); A(f"    s_xor_b32 s12, {gsrc}, s13")
    elif gsrc != "s12":
        A("    s_mov_b32 s12, s2")
    A("    s_lshl_b32 s29, s12, 15")
    A(f"    s_mul_i32 s13, s15, {woff}")
    A("    s_add_u32 s13, s13, s29")
    A("    s_add_u32 s13, s13, 4096")
    A("    v_add_u32 v2, s13, v2")
    for k, wn in enumerate(wins[1:], 1):
        A(f"    v_add_u32 v{AD+k}, {wn*8192}, v2")
    A("    s_and_b32 s13, s12, 31")
    A("    s_lshl_b32 s13, s13, 5")
    if layout == 0 and NC >= 2:
        A(f"    s_lshl_b32 s30, s15, {(2*NC).bit_length()-1}")
        A("    s_add_u32 s13, s13, s30")
    elif layout == 0:
        A("    s_lshr_b32 s30, s15, 1"); A("    s_lshl_b32 s30, s30, 2"); A("    s_add_u32 s13, s13, s30")
    A("    s_waitcnt lgkmcnt(0)")
    if prof: A("    s_memrealtime s[48:49]")
    def mem(i):
        k = wins.index(ioff[i] // 8192)
        return f"v{AD+k}", ioff[i] % 8192 - 4096
    def load(i, pol):
        a, o = mem(i)
        A(f"    global_load_dwordx4 v[{X+4*i}:{X+4*i+3}], {a}, s[4:5] offset:{o} {POL[pol]}".rstrip())
    def gb():
        if layout == 0:
            n = max(1, NC // 2)
            sfx = {1: "dword", 2: "dwordx2"}[n]
            rg = (lambda r: f"s{r}") if n == 1 else (lambda r: f"s[{r}:{r+n-1}]")
            A(f"    s_load_{sfx} {rg(64)}, s[6:7], s13")
            A(f"    s_load_{sfx} {rg(72)}, s[8:9], s13")
        else:
            A("    s_load_dwordx8 s[64:71], s[6:7], s13")
            A("    s_load_dwordx8 s[72:79], s[8:9], s13")
    if early: gb()
    if num in (2, 4):
        A("    s_add_u32 s16, s4, s29")
        A("    s_addc_u32 s17, s5, 0")
        A("    s_load_dword s31, s[16:17], 0")
    if ldB is not None:
        ldB = (ldB * NL)[:NL]
        A("    s_cmp_ge_u32 s2, 256"); A("    s_cbranch_scc1 L_ldB")
        for i in range(NL): load(i, ld[i])
        A("    s_branch L_ldD"); A("L_ldB:")
        for i in range(NL): load(i, ldB[i])
        A("L_ldD:")
    else:
        for i in range(NL):
            if two and i == split:
                A("    s_cmp_eq_u32 s14, 0"); A("    s_cbranch_scc1 L_nb"); A("    s_barrier"); A("L_nb:")
            if i == thr:
                A("    s_cmp_lt_u32 s2, 256"); A("    s_cbranch_scc1 L_nt"); A(f"    s_waitcnt vmcnt({thrw})"); A("L_nt:")
            load(i, ld[i])
        if two and split >= NL:
            A("    s_cmp_eq_u32 s14, 0"); A("    s_cbranch_scc1 L_nb"); A("    s_barrier"); A("L_nb:")
    if not early: gb()
    for r in range(4):
        if num != 4: A(f"    v_mov_b32 v{ONE+r}, 0x3f803f80")
    if num == 0:
        for r in range(4):
            m = 0
            for l in range(64):
                if (l & 15) == 4 * (l >> 4) + r: m |= 1 << l
            A(f"    s_mov_b32 s{20+2*r}, {m & 0xffffffff:#x}")
            A(f"    s_mov_b32 s{21+2*r}, {m >> 32:#x}")
    if two:
        A(f"    s_lshl_b32 s30, s14, {(8*W).bit_length()-1}")
        A(f"    v_mov_b32 v{LR}, s30")
    else:
        A(f"    v_mov_b32 v{LR}, 0")
    A("    s_mov_b32 s28, 0xffff0000")
    A("    s_waitcnt lgkmcnt(0)")
    if num in (2, 4):
        A("    s_lshl_b32 s30, s31, 16")
        A("    s_mov_b32 s31, s30")
    G = 80
    if layout == 0:
        if NC == 1:
            A("    s_and_b32 s13, s15, 1"); A("    s_lshl_b32 s13, s13, 4"); A("    s_lshr_b32 s64, s64, s13"); A("    s_lshr_b32 s72, s72, s13")
        for j in range(NC):
            for base, dst in ((64, G+2*j), (72, G+2*j+1)):
                if j % 2 == 0: A(f"    s_lshl_b32 s{dst}, s{base+j//2}, 16")
                else: A(f"    s_and_b32 s{dst}, s{base+j//2}, s28")
    else:
        if woff == 2048: A("    s_lshl_b32 s13, s15, 4")
        else: A("    s_lshr_b32 s13, s15, 1"); A("    s_lshl_b32 s13, s13, 4")
        cwmax = (woff * (W - 1)) >> 11
        for j, cs in enumerate(cslots):
            for base, dst in ((64, G+2*j), (72, G+2*j+1)):
                if cwmax <= 1:
                    A(f"    s_lshr_b32 s{dst}, s{base+cs//2}, s13"); A(f"    s_lshl_b32 s{dst}, s{dst}, 16")
                else:
                    assert cwmax <= 3 and cs % 4 == 0
                    A(f"    s_lshr_b64 s[16:17], s[{base+cs//2}:{base+cs//2+1}], s13"); A(f"    s_lshl_b32 s{dst}, s16, 16")
    GD = 32
    if sepsh == 2:
        assert NC <= 4 or not prof
        GD = 32 if not prof else 84
        if prof: assert NC <= 4
        for j in reversed(range(NC)):
            A(f"    s_mov_b32 s{GD+4*j+3}, s{G+2*j+1}"); A(f"    s_mov_b32 s{GD+4*j+2}, s{G+2*j+1}")
            A(f"    s_mov_b32 s{GD+4*j+1}, s{G+2*j}"); A(f"    s_mov_b32 s{GD+4*j}, s{G+2*j}")
    for i in range(NL):
        A(f"    s_waitcnt vmcnt({NL-1-i})")
        if prof and i == 0: A("    s_memrealtime s[50:51]")
        if prof and i == NL-1: A("    s_memrealtime s[52:53]")
        x = X + 4 * i; f = F + 8 * i
        if num == 0:
            A(f"    v_mfma_f32_16x16x32_bf16 v[{S2}:{S2+3}], v[{x}:{x+3}], v[{x}:{x+3}], {'0' if i == 0 else f'v[{S2}:{S2+3}]'}")
        if num != 4: A(f"    v_mfma_f32_16x16x32_bf16 v[{S1}:{S1+3}], v[{ONE}:{ONE+3}], v[{x}:{x+3}], {'0' if i == 0 else f'v[{S1}:{S1+3}]'}")
        for k in range(4):
            A(f"    v_lshlrev_b32 v{f+2*k}, 16, v{x+k}")
            A(f"    v_and_b32 v{f+2*k+1}, s28, v{x+k}")
        if num in (2, 4):
            for k in range(4):
                A(f"    v_pk_add_f32 v[{f+2*k}:{f+2*k+1}], v[{f+2*k}:{f+2*k+1}], s[30:31] neg_lo:[0,1] neg_hi:[0,1]")
            for k in range(4):
                acc = S2 + 2 * (k & 1)
                if num == 4:
                    a1 = S1 + 2 * (k & 1)
                    if i == 0 and k == 2: A(f"    v_pk_add_f32 v[{S1}:{S1+1}], v[{f}:{f+1}], v[{f+4}:{f+5}]")
                    elif i == 0 and k == 3: A(f"    v_pk_add_f32 v[{S1+2}:{S1+3}], v[{f+2}:{f+3}], v[{f+6}:{f+7}]")
                    elif i > 0: A(f"    v_pk_add_f32 v[{a1}:{a1+1}], v[{a1}:{a1+1}], v[{f+2*k}:{f+2*k+1}]")
                if i == 0 and k < 2:
                    A(f"    v_pk_mul_f32 v[{acc}:{acc+1}], v[{f+2*k}:{f+2*k+1}], v[{f+2*k}:{f+2*k+1}]")
                else:
                    A(f"    v_pk_fma_f32 v[{acc}:{acc+1}], v[{f+2*k}:{f+2*k+1}], v[{f+2*k}:{f+2*k+1}], v[{acc}:{acc+1}]")
    DPP = "row_mask:0xf bank_mask:0xf"
    def xwave(regs, off, nbar=None):
        n = len(regs)
        A("    s_mov_b32 exec_lo, 0")
        A("    s_mov_b32 exec_hi, 0x80000000")
        A(f"    ds_write_b64 v{LW}, v[{regs[0]}:{regs[0]+1}] offset:{off}")
        A("    s_mov_b64 exec, -1")
        A("    s_waitcnt lgkmcnt(0)")
        A("    s_barrier")
        for j in range(W // 2):
            A(f"    ds_read_b128 v[{T+4*j}:{T+4*j+3}], v{LR} offset:{off+16*j}")
        A("    s_waitcnt lgkmcnt(0)")
        m = W
        while m > 1:
            m //= 2
            for j in range(m):
                if n == 2: A(f"    v_pk_add_f32 v[{T+2*j}:{T+2*j+1}], v[{T+2*j}:{T+2*j+1}], v[{T+2*(j+m)}:{T+2*(j+m)+1}]")
                else: A(f"    v_add_f32 v{T+2*j}, v{T+2*j}, v{T+2*(j+m)}")
    MU = ONE
    if num in (0, 2, 4):
        Q = S1 + 1
        if num == 0:
            A(f"    v_cndmask_b32 v1, 0, v{S2}, s[20:21]")
            A(f"    v_cndmask_b32 v1, v1, v{S2+1}, s[22:23]")
            A(f"    v_cndmask_b32 v1, v1, v{S2+2}, s[24:25]")
            A(f"    v_cndmask_b32 v{Q}, v1, v{S2+3}, s[26:27]")
        elif num == 2:
            A(f"    v_pk_add_f32 v[{S2}:{S2+1}], v[{S2}:{S2+1}], v[{S2+2}:{S2+3}]")
            A(f"    v_add_f32 v{Q}, v{S2}, v{S2+1}")
        else:
            A(f"    v_pk_add_f32 v[{S1}:{S1+1}], v[{S1}:{S1+1}], v[{S1+2}:{S1+3}]")
            A(f"    v_pk_add_f32 v[{S2}:{S2+1}], v[{S2}:{S2+1}], v[{S2+2}:{S2+3}]")
            A(f"    v_add_f32 v{S1}, v{S1}, v{S1+1}")
            A(f"    v_add_f32 v{Q}, v{S2}, v{S2+1}")
        A("    s_nop 0")
        for sh in (8, 4, 2, 1):
            A(f"    v_add_f32_dpp v{S1}, v{S1}, v{S1} row_ror:{sh} {DPP}")
            A(f"    v_add_f32_dpp v{Q}, v{Q}, v{Q} row_ror:{sh} {DPP}")
            A("    s_nop 0")
        if num == 4:
            A(f"    v_add_f32_dpp v{S1}, v{S1}, v{S1} row_bcast:15 row_mask:0xa bank_mask:0xf")
            A(f"    v_add_f32_dpp v{Q}, v{Q}, v{Q} row_bcast:15 row_mask:0xa bank_mask:0xf")
            A("    s_nop 0")
            A(f"    v_add_f32_dpp v{S1}, v{S1}, v{S1} row_bcast:31 row_mask:0xc bank_mask:0xf")
            A(f"    v_add_f32_dpp v{Q}, v{Q}, v{Q} row_bcast:31 row_mask:0xc bank_mask:0xf")
        else:
            A("    s_nop 0")
            A(f"    v_add_f32_dpp v{Q}, v{Q}, v{Q} row_bcast:15 row_mask:0xa bank_mask:0xf")
            A("    s_nop 1")
            A(f"    v_add_f32_dpp v{Q}, v{Q}, v{Q} row_bcast:31 row_mask:0xc bank_mask:0xf")
        xwave([S1, Q], 0)
        if prof: A("    s_memrealtime s[54:55]")
        if num == 4:
            A(f"    v_mul_f32 v{T}, 0x38800000, v{T}")
            A(f"    v_mul_f32 v{T+1}, 0x38800000, v{T+1}")
            A(f"    v_add_f32 v{T+2}, s30, v{T}")
            A(f"    v_fma_f32 v{T+1}, -v{T}, v{T}, v{T+1}")
            A(f"    v_cvt_pk_bf16_f32 v{T+2}, v{T+2}, v{T+2}")
            A(f"    v_max_f32 v{T+1}, 0, v{T+1}")
            A(f"    v_and_b32 v{T+2}, s28, v{T+2}")
            A(f"    v_subrev_f32 v{MU}, s30, v{T+2}")
            A(f"    v_sub_f32 v{T+3}, v{T}, v{MU}")
            A(f"    v_fma_f32 v{T}, v{T+3}, v{T+3}, v{T+1}")
        else:
            A(f"    v_mul_f32 v{T}, 0x38800000, v{T}")
            A(f"    v_mul_f32 v{T+1}, 0x38800000, v{T+1}")
            A(f"    v_cvt_pk_bf16_f32 v{T+2}, v{T}, v{T}")
            if num == 2:
                A(f"    v_subrev_f32 v{T+4}, s30, v{T}")
                mk = T + 4
            else:
                mk = T
            A(f"    v_and_b32 v{T+2}, s28, v{T+2}")
            A(f"    v_fma_f32 v{T+1}, -v{mk}, v{mk}, v{T+1}")
            A(f"    v_sub_f32 v{T+3}, v{T}, v{T+2}")
            A(f"    v_max_f32 v{T+1}, 0, v{T+1}")
            if num == 2: A(f"    v_subrev_f32 v{MU}, s30, v{T+2}")
            else: A(f"    v_mov_b32 v{MU}, v{T+2}")
            A(f"    v_fma_f32 v{T}, v{T+3}, v{T+3}, v{T+1}")
    else:
        for sh in (8, 4, 2, 1):
            A(f"    v_add_f32_dpp v{S1}, v{S1}, v{S1} row_ror:{sh} {DPP}")
            if sh != 1: A("    s_nop 1")
        xwave([S1], 0)
        A(f"    v_mul_f32 v{T}, 0x38800000, v{T}")
        A(f"    v_cvt_pk_bf16_f32 v{T}, v{T}, v{T}")
        A(f"    v_and_b32 v{MU}, s28, v{T}")
        A(f"    v_and_b32 v{MU+1}, s28, v{T}")
        for i in range(NL):
            f = F + 8 * i
            for k in range(4):
                A(f"    v_pk_add_f32 v[{f+2*k}:{f+2*k+1}], v[{f+2*k}:{f+2*k+1}], v[{MU}:{MU+1}] neg_lo:[0,1] neg_hi:[0,1]")
            for k in range(4):
                acc = S2 + 2 * (k & 1)
                if i == 0 and k < 2:
                    A(f"    v_pk_mul_f32 v[{acc}:{acc+1}], v[{f+2*k}:{f+2*k+1}], v[{f+2*k}:{f+2*k+1}]")
                else:
                    A(f"    v_pk_fma_f32 v[{acc}:{acc+1}], v[{f+2*k}:{f+2*k+1}], v[{f+2*k}:{f+2*k+1}], v[{acc}:{acc+1}]")
        A(f"    v_pk_add_f32 v[{S2}:{S2+1}], v[{S2}:{S2+1}], v[{S2+2}:{S2+3}]")
        A(f"    v_add_f32 v{S2}, v{S2}, v{S2+1}")
        for sh in (8, 4, 2, 1):
            A("    s_nop 1")
            A(f"    v_add_f32_dpp v{S2}, v{S2}, v{S2} row_ror:{sh} {DPP}")
        A("    s_nop 1")
        A(f"    v_add_f32_dpp v{S2}, v{S2}, v{S2} row_bcast:15 row_mask:0xa bank_mask:0xf")
        A("    s_nop 1")
        A(f"    v_add_f32_dpp v{S2}, v{S2}, v{S2} row_bcast:31 row_mask:0xc bank_mask:0xf")
        assert not two
        xwave([S2], W * 8)
        if prof: A("    s_memrealtime s[54:55]")
        A(f"    v_mul_f32 v{T}, 0x38800000, v{T}")
    A(f"    v_cvt_pk_bf16_f32 v{T}, v{T}, v{T}")
    A(f"    v_and_b32 v{T}, s28, v{T}")
    A(f"    v_add_f32 v{T}, 0x3727c5ac, v{T}")
    A(f"    v_cvt_pk_bf16_f32 v{T}, v{T}, v{T}")
    A(f"    v_and_b32 v{T}, s28, v{T}")
    A(f"    v_sqrt_f32 v{T}, v{T}")
    A("    s_nop 0")
    A(f"    v_cvt_pk_bf16_f32 v{T}, v{T}, v{T}")
    A(f"    v_and_b32 v{T}, s28, v{T}")
    A(f"    v_rcp_f32 v{S2}, v{T}")
    if sepsh == 2:
        A(f"    v_rcp_f32 v{S2+1}, v{T}")
        A(f"    v_mov_b32 v{MU+1}, v{MU}")
    else:
        A("    s_nop 0")
    def outp(stp):
        done = set()
        order = list(range(NL))
        if strev: order.reverse()
        def sc(j):
            done.add(j)
            if sepsh == 2:
                A(f"    v_pk_mul_f32 v[{SC+2*j}:{SC+2*j+1}], v[{S2}:{S2+1}], s[{GD+4*j}:{GD+4*j+1}]")
                if num == 3:
                    A(f"    v_mov_b32 v{SH+2*j}, s{GD+4*j+2}"); A(f"    v_mov_b32 v{SH+2*j+1}, s{GD+4*j+2}")
                else:
                    A(f"    v_pk_fma_f32 v[{SH+2*j}:{SH+2*j+1}], v[{MU}:{MU+1}], v[{SC+2*j}:{SC+2*j+1}], s[{GD+4*j+2}:{GD+4*j+3}] neg_lo:[1,0,0] neg_hi:[1,0,0]")
                return
            if sepsh:
                sh = SH + 2*j
            else:
                sh = SC + 2*j + 1
            A(f"    v_mul_f32 v{SC+2*j}, s{G+2*j}, v{S2}")
            if num == 3: A(f"    v_mov_b32 v{sh}, s{G+2*j+1}")
            else: A(f"    v_fma_f32 v{sh}, -v{MU}, v{SC+2*j}, s{G+2*j+1}")
        if scpre:
            for i in order:
                j = cslots.index(ioff[i] >> 11)
                if j not in done: sc(j)
        for n_, i in enumerate(order):
            j = cslots.index(ioff[i] >> 11)
            if j not in done:
                sc(j)
                if scnop: A(f"    s_nop {scnop-1}")
            f = F + 8 * i
            for k in range(4):
                if sepsh == 2:
                    A(f"    v_pk_fma_f32 v[{f+2*k}:{f+2*k+1}], v[{f+2*k}:{f+2*k+1}], v[{SC+2*j}:{SC+2*j+1}], v[{SH+2*j}:{SH+2*j+1}]")
                elif sepsh:
                    A(f"    v_pk_fma_f32 v[{f+2*k}:{f+2*k+1}], v[{f+2*k}:{f+2*k+1}], v[{SC+2*j}:{SC+2*j+1}], v[{SH+2*j}:{SH+2*j+1}] op_sel_hi:[1,0,0]")
                else:
                    A(f"    v_pk_fma_f32 v[{f+2*k}:{f+2*k+1}], v[{f+2*k}:{f+2*k+1}], v[{SC+2*j}:{SC+2*j+1}], v[{SC+2*j}:{SC+2*j+1}] op_sel:[0,0,1] op_sel_hi:[1,0,1]")
            o = X + 4 * i
            for k in range(4):
                A(f"    v_cvt_pk_bf16_f32 v{o+k}, v{f+2*k}, v{f+2*k+1}")
            a, off = mem(i)
            if stB is None:
                A(f"    global_store_dwordx4 {a}, v[{o}:{o+3}], s[10:11] offset:{off} {POL[stp[n_]]}".rstrip())
            else:
                sb = (stB * NL)[:NL] if len(stB) == 1 else stB
                if sb[n_] == stp[n_]:
                    A(f"    global_store_dwordx4 {a}, v[{o}:{o+3}], s[10:11] offset:{off} {POL[stp[n_]]}".rstrip())
                else:
                    A(f"    s_cbranch_scc1 L_sb{n_}")
                    A(f"    global_store_dwordx4 {a}, v[{o}:{o+3}], s[10:11] offset:{off} {POL[stp[n_]]}".rstrip())
                    A(f"    s_branch L_sd{n_}")
                    A(f"L_sb{n_}:")
                    A(f"    global_store_dwordx4 {a}, v[{o}:{o+3}], s[10:11] offset:{off} {POL[sb[n_]]}".rstrip())
                    A(f"L_sd{n_}:")
    if stB is not None:
        A("    s_cmp_eq_u32 s14, 1" if two else "    s_cmp_ge_u32 s2, 256")
    outp(st)
    if wb:
        if wb in (1, 2, 4):
            lo = {1: 256, 2: 248, 4: 504}[wb]
            A("    s_lshr_b32 s13, s2, 3"); A(f"    s_cmp_lg_u32 s13, {lo//8}"); A("    s_cbranch_scc1 L_nwb")
        elif wb == 3:
            A("    s_cmp_lt_u32 s2, 256"); A("    s_cbranch_scc1 L_nwb")
        A(f"    s_cmp_lg_u32 s3, {W-1}"); A("    s_cbranch_scc1 L_nwb")
        A("    buffer_wbl2 sc1")
        A("L_nwb:")
    if two:
        A("    s_cmp_eq_u32 s14, 0"); A("    s_cbranch_scc0 L_fin"); A("    s_barrier"); A("L_fin:")
    if prof:
        A("    s_memrealtime s[56:57]")
        A("    s_waitcnt vmcnt(0)")
        A("    s_memrealtime s[58:59]")
        A("    s_getreg_b32 s62, hwreg(HW_REG_HW_ID)")
        A("    s_getreg_b32 s63, hwreg(HW_REG_XCC_ID)")
        A("    s_and_b32 s63, s63, 0xf"); A("    s_lshl_b32 s63, s63, 28"); A("    s_and_b32 s62, s62, 0xfffffff"); A("    s_or_b32 s62, s62, s63")
        A("    s_waitcnt lgkmcnt(0)")
        for k, r in enumerate([40, 48, 50, 52, 54, 56, 58, 62]):
            A(f"    v_mov_b32 v{8+k}, s{r}")
        A(f"    s_mul_i32 s63, s2, {nt//64}"); A("    s_add_u32 s63, s63, s3"); A("    s_lshl_b32 s63, s63, 5")
        A("    v_mov_b32 v1, s63"); A("    s_mov_b64 exec, 1")
        A("    global_store_dwordx4 v1, v[8:11], s[60:61] sc0 sc1")
        A("    global_store_dwordx4 v1, v[12:15], s[60:61] offset:16 sc0 sc1")
    A("L_end:")
    A("    s_endpgm")
    nv = max(vg, (NV + 7) // 8 * 8)
    A('.section .rodata,"a"'); A(".p2align 6"); A(f".amdhsa_kernel {NAME}")
    A(f"  .amdhsa_next_free_vgpr {nv}")
    A(f"  .amdhsa_next_free_sgpr {max(G+2*NC, GD+4*NC)}")
    A(f"  .amdhsa_accum_offset {nv}")
    A("  .amdhsa_group_segment_fixed_size 0"); A("  .amdhsa_kernarg_size 48"); A("  .amdhsa_user_sgpr_count 2")
    A("  .amdhsa_user_sgpr_kernarg_segment_ptr 1"); A("  .amdhsa_system_sgpr_workgroup_id_x 1")
    A("  .amdhsa_float_denorm_mode_32 3")
    A(".end_amdhsa_kernel")
    return "\n".join(L) + "\n"

if __name__ == "__main__":
    args = sys.argv[1:]
    out = args[args.index('-o') + 1]
    kw = {}
    for a in args:
        if '=' in a:
            k, v = a.split('=')
            kw[k] = v if k in ('ld', 'st', 'ldB', 'stB') else int(v)
    open(out, 'w').write(gen(**kw))
```

```python
import sys, subprocess, re, os, tempfile

HEADER = """; Kernarg layout for this problem (48 bytes, ptrs only, base s[0:1]):
;   offset   0: d_in[0] x  shape=(16, 512, 32, 32) dtype=bfloat16 strides=(1048576, 2048, 64, 2) contiguous=True
;   offset   8: d_in[1] g  shape=(512,) dtype=bfloat16 strides=(2,) contiguous=True
;   offset  16: d_in[2] b  shape=(512,) dtype=bfloat16 strides=(2,) contiguous=True
;
; groups A = w and B = w + 256 (same channels, batch + 8), each read once into registers.
; Statistics use the shifted-data algorithm: d = x - K with K taken from the group's own data,
"""
NAME = "standalone__groupnorm__sampling_kernel"
POL = {'-': '', 'n': ' nt', 's': ' sc0 sc1', 'a': ' sc1', 'w': ' sc0', 'S': ' sc0 sc1 nt', 'A': ' sc1 nt', 'W': ' sc0 nt'}
WIN = 0x440

def body(W, ld, st, stB, sched, barA, barB, layA, layB, fwd, med, ntouch, tpos, skew, ilv, nomfma):
    NL = 32 // W
    stB = st if stB is None else stB
    L = []
    def A(s, c=None): L.append(s if c is None else f"{s:<88}; {c}")
    step = NL // 4
    def layout(lay):
        if lay == 1:
            return dict(woff=8192 // W, ioff=[(i // step) * 8192 + (i % step) * 1024 for i in range(NL)], chan=[i // step for i in range(NL)], NC=4, nad=4, bias=0)
        return dict(woff=1024 * NL, ioff=[1024 * i for i in range(NL)], chan=[i // 2 for i in range(NL)], NC=NL // 2, nad=1, bias=4096 if NL > 4 else 0)
    LA, LB = layout(layA), layout(layB)
    same = layA == layB
    LR, LW = 1, 2
    S1, S2, ONE = 4, 8, 12
    LA['AD'] = 16; LB['AD'] = 16 if same else 20
    LA['G'] = 32; LB['G'] = 32 if same else 64
    T = 24; P = 28
    XA = P + 2 * W; XB = XA + 4 * NL; F = XB + 4 * NL
    NV = F + 8 * NL
    R, MU, SC, SH = 4, 6, 8, 10
    barA = barA if barA else '1' * 3; barB = barB if barB else '1' * 3
    def touch():
        for k in range(ntouch, 0, -1):
            A(f"    s_cmp_eq_u32 s3, {W - 1 - (ntouch - k)}", "one wave per 1088-byte I-cache window visits it now, under the kernarg latency" if k == ntouch else None)
            A(f"    s_cbranch_scc1 L_t{k}")
        if ntouch: A("L_back:")
    if skew:
        A("    s_getreg_b32 s13, hwreg(HW_REG_XCC_ID)"); A("    s_and_b32 s13, s13, 4")
        A("    s_cbranch_scc%d L_nsk" % (0 if skew > 0 else 1)); A(f"    s_sleep {abs(skew)}"); A("L_nsk:")
    A("    s_load_dwordx8 s[4:11], s[0:1], 0", "x, g, b, out")
    A("    v_readfirstlane_b32 s3, v0")
    A("    s_cmp_ge_u32 s2, 256")
    A("    s_cbranch_scc1 L_end", "over-launched workgroups leave")
    A("    s_lshr_b32 s3, s3, 6", "wave id")
    if tpos == 0: touch()
    A("    v_and_b32 v3, 63, v0")
    A("    s_lshl_b32 s12, s2, 15", "byte base of group A")
    A("    v_lshlrev_b32 v3, 4, v3")
    def addr(Y, first, rest):
        if first:
            A(f"    s_lshl_b32 s13, s3, {Y['woff'].bit_length()-1}")
            A("    s_add_u32 s13, s13, s12")
            if Y['bias']: A(f"    s_add_u32 s13, s13, {Y['bias']}")
            A(f"    v_add_u32 v{Y['AD']}, s13, v3", "lane offset")
        if rest:
            for k in range(1, Y['nad']): A(f"    v_add_u32 v{Y['AD']+k}, {8192*k}, v{Y['AD']}")
    addr(LA, 1, 1)
    A("    s_and_b32 s29, s2, 31")
    A("    s_lshl_b32 s29, s29, 5", "byte offset of the group's channels in g / b")
    if tpos == 1: touch()
    A("    s_waitcnt lgkmcnt(0)")
    def mem(Y, i): return f"v{Y['AD'] + Y['ioff'][i] // 8192}", Y['ioff'][i] % 8192 - Y['bias']
    def load(Y, X, base, i):
        a, o = mem(Y, i)
        A(f"    global_load_dwordx4 v[{X+4*i}:{X+4*i+3}], {a}, s[{base}:{base+1}] offset:{o}{POL[ld]}")
    def store(Y, X, base, i, p):
        a, o = mem(Y, i)
        A(f"    global_store_dwordx4 {a}, v[{X+4*i}:{X+4*i+3}], s[{base}:{base+1}] offset:{o}{POL[p]}")
    def scal1():
        A("    s_load_dwordx8 s[48:55], s[6:7], s29", "gamma"); A("    s_load_dwordx8 s[56:63], s[8:9], s29", "beta")
        A("    s_add_u32 s14, s4, s12"); A("    s_addc_u32 s15, s5, 0")
        A("    s_load_dwordx2 s[20:21], s[14:15], 0", "first elements of A -> shift K")
        A("    s_add_u32 s16, s4, 0x800000", "x base of group B"); A("    s_addc_u32 s17, s5, 0")
        A("    s_add_u32 s26, s16, s12"); A("    s_addc_u32 s27, s17, 0")
        A("    s_load_dwordx2 s[22:23], s[26:27], 0", "first elements of B")
    def scal2():
        A("    s_add_u32 s18, s10, 0x800000", "out base of group B"); A("    s_addc_u32 s19, s11, 0")
        if not same: addr(LB, 1, 1)
        A("    s_mov_b32 s28, 0xffff0000")
        A("    s_mov_b32 s24, 0x38800000", "1/16384")
        A("    s_mov_b32 s25, 0x38800000")
        if not nomfma: A(f"    v_mov_b32 v{ONE}, 0x3f803f80", "bf16 ones")
        A(f"    v_mov_b32 v{LR}, 0")
        A(f"    v_lshlrev_b32 v{LW}, 3, s3".replace("v_lshlrev_b32", "v_lshlrev_b32_e64"), "LDS slot of this wave")
        for r in range(1, 4):
            if not nomfma: A(f"    v_mov_b32 v{ONE+r}, v{ONE}")
    anyA = layA == 1 and '1' in barA
    for i in range(NL):
        load(LA, XA, 4, i)
        if anyA and i == step - 1: scal1()
        if anyA and i == 2 * step - 1: scal2()
        if i == NL - 1:
            if not anyA: scal1(); scal2()
            if tpos == 2: touch()
            if ilv != 0: A("    s_barrier")
        elif layA == 1 and (i + 1) % step == 0 and barA[i // step] == '1': A("    s_barrier")
    nB = NL if ilv < 0 else ilv
    for i in range(nB):
        load(LB, XB, 16, i)
        if layB == 1 and (i + 1) % step == 0 and i < nB - 1 and barB[i // step] == '1': A("    s_barrier")
    A("    s_waitcnt lgkmcnt(0)")
    for src, dst in ((20, 30), (22, 26)):
        if med:
            A(f"    s_lshl_b32 s14, s{src}, 16"); A(f"    s_and_b32 s15, s{src}, s28"); A(f"    s_lshl_b32 s13, s{src+1}, 16")
            A("    v_mov_b32 v0, s14"); A("    v_mov_b32 v3, s15")
            A("    v_med3_f32 v0, v0, v3, s13", "K = median of three elements: a lone outlier is not picked")
            A("    s_nop 0")
            A(f"    v_readfirstlane_b32 s{dst}, v0"); A(f"    v_readfirstlane_b32 s{dst+1}, v0")
        else:
            A(f"    s_lshl_b32 s{dst}, s{src}, 16"); A(f"    s_lshl_b32 s{dst+1}, s{src}, 16")
    def gb(Y, lay):
        G = Y['G']
        if lay == 1:
            if W == 4: A("    s_lshl_b32 s13, s3, 4")
            else: A("    s_lshr_b32 s13, s3, 1"); A("    s_lshl_b32 s13, s13, 4")
            for j in range(4):
                for base, dst in ((48, G + 4*j), (56, G + 2 + 4*j)):
                    A(f"    s_lshr_b64 s[14:15], s[{base+2*j}:{base+2*j+1}], s13")
                    A(f"    s_lshl_b32 s{dst}, s14, 16"); A(f"    s_lshl_b32 s{dst+1}, s14, 16")
        else:
            nd = Y['NC'] // 2
            A(f"    s_mul_i32 m0, s3, {nd}" if nd > 1 else "    s_mov_b32 m0, s3")
            A("    s_nop 0")
            for d in range(nd):
                for base, off in ((48, 0), (56, 2)):
                    A(f"    s_movrels_b32 s14, s{base+d}")
                    A(f"    s_lshl_b32 s{G+8*d+off}, s14, 16"); A(f"    s_lshl_b32 s{G+8*d+off+1}, s14, 16")
                    A(f"    s_and_b32 s{G+8*d+4+off}, s14, s28"); A(f"    s_and_b32 s{G+8*d+4+off+1}, s14, s28")
    gb(LA, layA)
    if not same: gb(LB, layB)
    order = list(range(NL)) if fwd else list(range(NL - 1, -1, -1))
    def stat(X, K, i):
        x = X + 4*i; f = F + 8*i
        if not nomfma: A(f"    v_mfma_f32_16x16x32_bf16 v[{S1}:{S1+3}], v[{ONE}:{ONE+3}], v[{x}:{x+3}], {'0' if i == 0 else f'v[{S1}:{S1+3}]'}", "column sums of x" if i == 0 else None)
        for k in range(4):
            A(f"    v_lshlrev_b32 v{f+2*k}, 16, v{x+k}"); A(f"    v_and_b32 v{f+2*k+1}, s28, v{x+k}")
        for k in range(4):
            A(f"    v_pk_add_f32 v[{f+2*k}:{f+2*k+1}], v[{f+2*k}:{f+2*k+1}], s[{K}:{K+1}] neg_lo:[0,1] neg_hi:[0,1]", "d = x - K" if i == 0 and k == 0 else None)
        for k in range(4):
            acc = S2 + 2*(k & 1)
            if nomfma:
                a1 = S1 + 2*(k & 1)
                if i == 0 and k >= 2: A(f"    v_pk_add_f32 v[{a1}:{a1+1}], v[{f+2*k-4}:{f+2*k-3}], v[{f+2*k}:{f+2*k+1}]")
                elif i > 0: A(f"    v_pk_add_f32 v[{a1}:{a1+1}], v[{a1}:{a1+1}], v[{f+2*k}:{f+2*k+1}]")
            if i == 0 and k < 2: A(f"    v_pk_mul_f32 v[{acc}:{acc+1}], v[{f+2*k}:{f+2*k+1}], v[{f+2*k}:{f+2*k+1}]", "sum d*d" if k == 0 else None)
            else: A(f"    v_pk_fma_f32 v[{acc}:{acc+1}], v[{f+2*k}:{f+2*k+1}], v[{f+2*k}:{f+2*k+1}], v[{acc}:{acc+1}]")
    def reduce(K, off, hook=None):
        D = "row_mask:0xf bank_mask:0xf"; Q = S1 + 1
        if nomfma:
            A(f"    v_pk_add_f32 v[{S1}:{S1+1}], v[{S1}:{S1+1}], v[{S1+2}:{S1+3}]")
            A(f"    v_pk_add_f32 v[{S2}:{S2+1}], v[{S2}:{S2+1}], v[{S2+2}:{S2+3}]")
            A(f"    v_add_f32 v{S1}, v{S1}, v{S1+1}")
            A(f"    v_add_f32 v{Q}, v{S2}, v{S2+1}")
            for m in [f"row_ror:{sh} {D}" for sh in (8, 4, 2, 1)] + ["row_bcast:15 row_mask:0xa bank_mask:0xf", "row_bcast:31 row_mask:0xc bank_mask:0xf"]:
                A("    s_nop 0")
                A(f"    v_add_f32_dpp v{S1}, v{S1}, v{S1} {m}")
                A(f"    v_add_f32_dpp v{Q}, v{Q}, v{Q} {m}")
        else:
            A(f"    v_pk_add_f32 v[{S2}:{S2+1}], v[{S2}:{S2+1}], v[{S2+2}:{S2+3}]")
            A(f"    v_add_f32 v{Q}, v{S2}, v{S2+1}")
            for sh in (8, 4, 2, 1):
                A(f"    v_add_f32_dpp v{S1}, v{S1}, v{S1} row_ror:{sh} {D}", "wave reduction: v4 over 16 columns, v5 over 64 lanes" if sh == 8 else None)
                A("    s_nop 0")
                A(f"    v_add_f32_dpp v{Q}, v{Q}, v{Q} row_ror:{sh} {D}")
            A("    s_nop 1")
            A(f"    v_add_f32_dpp v{Q}, v{Q}, v{Q} row_bcast:15 row_mask:0xa bank_mask:0xf")
            A("    s_nop 1")
            A(f"    v_add_f32_dpp v{Q}, v{Q}, v{Q} row_bcast:31 row_mask:0xc bank_mask:0xf")
        A("    s_mov_b32 exec_lo, 0")
        A("    s_mov_b32 exec_hi, 0x80000000", "lane 63 holds both totals")
        A(f"    ds_write_b64 v{LW}, v[{S1}:{Q}] offset:{off}")
        A("    s_mov_b64 exec, -1")
        if hook: hook()
        A("    s_waitcnt lgkmcnt(0)")
        A("    s_barrier")
        for j in range(W // 2): A(f"    ds_read_b128 v[{P+4*j}:{P+4*j+3}], v{LR} offset:{off+16*j}")
        for j in range(W // 2):
            A(f"    s_waitcnt lgkmcnt({W//2-1-j})")
            A(f"    v_pk_add_f32 v[{P+4*j}:{P+4*j+1}], v[{P+4*j}:{P+4*j+1}], v[{P+4*j+2}:{P+4*j+3}]")
            if j % 2 == 1: A(f"    v_pk_add_f32 v[{P+4*j-4}:{P+4*j-3}], v[{P+4*j-4}:{P+4*j-3}], v[{P+4*j}:{P+4*j+1}]")
        if W == 8: A(f"    v_pk_add_f32 v[{P}:{P+1}], v[{P}:{P+1}], v[{P+8}:{P+9}]")
        A(f"    v_pk_mul_f32 v[{P}:{P+1}], v[{P}:{P+1}], s[24:25]", "mean, E[d*d]")
        if nomfma:
            A(f"    v_add_f32 v{T}, s{K}, v{P}", "mean")
            A(f"    v_fma_f32 v{P+1}, -v{P}, v{P}, v{P+1}", "variance about the mean")
            A(f"    v_cvt_pk_bf16_f32 v{T+1}, 0, v{T}", "mu = bf16(mean), as f32")
            A(f"    v_subrev_f32 v{T+3}, s{K}, v{T+1}", "mu - K")
            A(f"    v_sub_f32 v{T+2}, v{P}, v{T+3}", "mean - mu")
        else:
            A(f"    v_subrev_f32 v{T}, s{K}, v{P}", "mean - K")
            A(f"    v_cvt_pk_bf16_f32 v{T+1}, 0, v{P}", "mu = bf16(mean), as f32")
            A(f"    v_fma_f32 v{P+1}, -v{T}, v{T}, v{P+1}", "variance about the mean")
            A(f"    v_sub_f32 v{T+2}, v{P}, v{T+1}", "mean - mu")
        A(f"    v_max_f32 v{P+1}, 0, v{P+1}")
        A(f"    v_fma_f32 v{P}, v{T+2}, v{T+2}, v{P+1}", "E[(x - mu)^2]")
        A(f"    v_cvt_pk_bf16_f32 v{P}, 0, v{P}")
        A(f"    v_add_f32 v{P}, 0x3727c5ac, v{P}", "+ 1e-5")
        A(f"    v_cvt_pk_bf16_f32 v{P}, 0, v{P}")
        A(f"    v_sqrt_f32 v{P}, v{P}")
        A(f"    v_subrev_f32 v{MU}, s{K}, v{T+1}", "mu - K")
        A(f"    v_cvt_pk_bf16_f32 v{P}, 0, v{P}")
        A(f"    v_rcp_f32 v{R}, v{P}")
        A(f"    v_rcp_f32 v{R+1}, v{P}")
        A(f"    v_subrev_f32 v{MU+1}, s{K}, v{T+1}")
    def outp(Y, X, base, p):
        cur = None; G = Y['G']
        for i in order:
            j = Y['chan'][i]; f = F + 8*i; o = X + 4*i
            if j != cur:
                cur = j
                A(f"    v_pk_mul_f32 v[{SC}:{SC+1}], v[{R}:{R+1}], s[{G+4*j}:{G+1+4*j}]", "scale = gamma / sd")
                A(f"    v_pk_fma_f32 v[{SH}:{SH+1}], v[{MU}:{MU+1}], v[{SC}:{SC+1}], s[{G+2+4*j}:{G+3+4*j}] neg_lo:[1,0,0] neg_hi:[1,0,0]", "shift = beta - (mu - K) * scale")
            for k in range(4): A(f"    v_pk_fma_f32 v[{f+2*k}:{f+2*k+1}], v[{f+2*k}:{f+2*k+1}], v[{SC}:{SC+1}], v[{SH}:{SH+1}]")
            for k in range(4): A(f"    v_cvt_pk_bf16_f32 v{o+k}, v{f+2*k}, v{f+2*k+1}")
            if p: store(Y, X, base, i, p)
    A("    ; ---------------- group A")
    for i in range(NL):
        A(f"    s_waitcnt vmcnt({NL-1-i+nB})")
        if nB < NL:
            load(LB, XB, 16, nB); nB += 1
        stat(XA, 30, i)
    reduce(30, 0)
    if sched == 'e':
        outp(LA, XA, 10, st); n = NL; sc = [0] * (NL + 2)
    else:
        sc = [int(c) for c in sched.ljust(NL + 2, '0')]; assert len(sc) == NL + 2 and sum(sc) == NL
        outp(LA, XA, 10, None); n = 0
    pend = list(order)
    def rel(c):
        nonlocal n
        for _ in range(c): store(LA, XA, 10, pend.pop(0), st); n += 1
    rel(sc[0])
    A("    ; ---------------- group B")
    for i in range(NL):
        A(f"    s_waitcnt vmcnt({NL-1-i+n})"); rel(sc[i+1]); stat(XB, 26, i)
    reduce(26, 8 * W, lambda: rel(sc[NL+1]))
    outp(LB, XB, 18, stB)
    A("L_end:")
    A("    s_endpgm")
    return L, NV, (64 if same else 80)

def sizes(lines):
    src = '.amdgcn_target "amdgcn-amd-amdhsa--gfx950"\n.text\n'
    for n, l in enumerate(lines): src += f"Z{n}:\n{l}\n"
    for k in range(1, 8):
        if f"L_t{k}:" not in src and f"L_t{k}" in src: src += f"L_t{k}:\n"
    d = tempfile.mkdtemp(); open(d + "/a.s", "w").write(src)
    subprocess.run(["clang", "-x", "assembler", "-target", "amdgcn-amd-amdhsa", "-mcpu=gfx950", "-c", d + "/a.s", "-o", d + "/a.o"], check=True)
    out = subprocess.run(["llvm-readelf", "-s", d + "/a.o"], capture_output=True, text=True).stdout
    off = {}
    for m in re.finditer(r"^\s*\d+:\s+([0-9a-f]+)\s+\d+\s+\S+\s+\S+\s+\S+\s+\S+\s+Z(\d+)$", out, re.M): off[int(m.group(2))] = int(m.group(1), 16)
    return [off[n] for n in range(len(lines))]

def gen(W=8, ld='-', st='n', stB=None, sched='e', barA='', barB='', layA=1, layB=1, fwd=0, med=1, vg=0, touch=1, tpos=0, skew=0, ilv=-1, nomfma=0):
    nt = 0
    while True:
        L, NV, NS = body(W, ld, st, stB, sched, barA, barB, layA, layB, fwd, med, nt, tpos, skew, ilv, nomfma)
        off = sizes(L)
        need = (off[-1] + 8 * nt) // WIN if touch else 0
        if need <= nt: break
        nt = need
    for k in range(1, nt + 1):
        off = sizes(L)
        cand = [n for n in range(len(L)) if k * WIN <= off[n] + 4 < k * WIN + 64 and not L[n].strip().startswith(';') and not L[n].endswith(':')]
        pref = [n for n in cand if 's_waitcnt' in L[n] or 's_nop' in L[n]]
        n = (pref or cand)[0]
        L[n:n] = [f"    s_branch L_s{k}", f"L_t{k}:", "    s_branch L_back", f"L_s{k}:"]
    H = [HEADER.rstrip(), f"; @launch grid=(256,1,1) block=({64*W},1,1) lds={16*W}", '.amdgcn_target "amdgcn-amd-amdhsa--gfx950"',
         ".text", f".globl {NAME}", ".p2align 8", f".type {NAME},@function", f"{NAME}:"]
    nv = max(vg, (NV + 7) // 8 * 8)
    E = ['.section .rodata,"a"', ".p2align 6", f".amdhsa_kernel {NAME}", f"  .amdhsa_next_free_vgpr {nv}", f"  .amdhsa_next_free_sgpr {NS}",
         f"  .amdhsa_accum_offset {nv}", "  .amdhsa_group_segment_fixed_size 0", "  .amdhsa_kernarg_size 48", "  .amdhsa_user_sgpr_count 2",
         "  .amdhsa_user_sgpr_kernarg_segment_ptr 1", "  .amdhsa_system_sgpr_workgroup_id_x 1", "  .amdhsa_float_denorm_mode_32 3", ".end_amdhsa_kernel"]
    return "\n".join(H + L + E) + "\n"

if __name__ == "__main__":
    args = sys.argv[1:]; out = args[args.index('-o') + 1]; kw = {}
    for a in args:
        if '=' in a:
            k, v = a.split('=')
            kw[k] = v if k in ('ld', 'st', 'stB', 'sched', 'barA', 'barB') else int(v)
    open(out, 'w').write(gen(**kw))
```

```python
import sys
from gen5 import sizes, POL, WIN, NAME

HEADER = """; Kernarg layout for this problem (48 bytes, ptrs only, base s[0:1]):
;   offset   0: d_in[0] x  shape=(16, 512, 32, 32) dtype=bfloat16 strides=(1048576, 2048, 64, 2) contiguous=True
;   offset   8: d_in[1] g  shape=(512,) dtype=bfloat16 strides=(2,) contiguous=True
;   offset  16: d_in[2] b  shape=(512,) dtype=bfloat16 strides=(2,) contiguous=True
;
; Every byte of x is read once, into registers: thread t holds bytes 16t..16t+15 of each of the four
; Pipeline: loads A0..A3, B0..B3 form one sequential stream per CU (barriers / counted waits keep the
; waves in step); A's outputs are stored while the last blocks of B arrive, B's outputs follow.
; Statistics: shifted-data algorithm.  d = x - K with K one of the group's own values; mean and
"""

def body(st, sched, barA, ilv, ntouch, skew, ld, two, fast, pad, mf):
    W, NL = 8, 4
    L = []
    def A(s, c=None): L.append(s if c is None else f"{s:<96}; {c}")
    LR, LW = 1, 2
    S1, S2 = 4, 8
    AD = 12
    T = 16
    P = 20
    XA = 36; XB = 52; F = 68
    NV = F + 32
    ONE = NV
    if mf: NV += 4
    R, MU, SC, SH = 4, 6, 8, 10
    if skew:
        A("    s_getreg_b32 s13, hwreg(HW_REG_XCC_ID)"); A("    s_and_b32 s13, s13, 4")
        A("    s_cbranch_scc%d L_nsk" % (0 if skew > 0 else 1)); A(f"    s_sleep {abs(skew)}"); A("L_nsk:")
    A("    s_load_dwordx8 s[4:11], s[0:1], 0", "x, g, b, out")
    A("    v_readfirstlane_b32 s3, v0")
    A("    s_cmp_ge_u32 s2, 256")
    A("    s_cbranch_scc1 L_end", "over-launched workgroups leave")
    A("    s_lshr_b32 s3, s3, 6", "wave id")
    A("    ; An instruction-cache miss brings in 1088 bytes.  While the kernarg load is in flight the two")
    A("    ; youngest waves visit the later windows of this code, so nobody misses behind the data stream.")
    for k in range(ntouch, 0, -1):
        A(f"    s_cmp_eq_u32 s3, {W - 1 - (ntouch - k)}")
        A(f"    s_cbranch_scc1 L_t{k}")
    A("L_back:")
    A("    s_lshl_b32 s12, s2, 15", "byte base of group A")
    A(f"    v_lshl_add_u32 v{AD}, v0, 4, s12", "lane offset in block 0")
    A("    s_and_b32 s29, s2, 31")
    for k in range(1, 4): A(f"    v_add_u32 v{AD+k}, {8192*k}, v{AD}")
    A("    s_lshl_b32 s29, s29, 5", "byte offset of the group's channels in g / b")
    A("    s_waitcnt lgkmcnt(0)")
    def load(X, base, i, c=None): A(f"    global_load_dwordx4 v[{X+4*i}:{X+4*i+3}], v{AD+i}, s[{base}:{base+1}]{POL[ld]}", c)
    def store(X, base, i, c=None): A(f"    global_store_dwordx4 v{AD+i}, v[{X+4*i}:{X+4*i+3}], s[{base}:{base+1}]{POL[st]}", c)
    load(XA, 4, 0, "A0")
    A("    s_load_dwordx8 s[48:55], s[6:7], s29", "gamma, 16 channels")
    A("    s_load_dwordx8 s[56:63], s[8:9], s29", "beta")
    A("    s_add_u32 s16, s4, 0x800000", "x of group B"); A("    s_addc_u32 s17, s5, 0")
    if not two:
        A("    s_add_u32 s14, s4, s12"); A("    s_addc_u32 s15, s5, 0")
        A("    s_load_dwordx2 s[20:21], s[14:15], 0", "first elements of A")
        A("    s_add_u32 s26, s16, s12"); A("    s_addc_u32 s27, s17, 0")
        A("    s_load_dwordx2 s[22:23], s[26:27], 0", "first elements of B")
    if barA[0] == '1': A("    s_barrier")
    load(XA, 4, 1, "A1")
    A("    s_add_u32 s18, s10, 0x800000", "out of group B"); A("    s_addc_u32 s19, s11, 0")
    A("    s_mov_b32 s28, 0xffff0000")
    A("    s_mov_b32 s24, 0x38800000", "1/16384")
    A("    s_mov_b32 s25, 0x38800000")
    if fast:
        A(f"    v_and_b32 v{LR}, 7, v0"); A(f"    v_lshlrev_b32 v{LR}, 3, v{LR}", "lane l gathers the partial sums of wave l & 7")
    else: A(f"    v_mov_b32 v{LR}, 0")
    if mf:
        A(f"    v_mov_b32 v{ONE}, 0x3f803f80", "bf16 ones")
        for r in range(1, 4): A(f"    v_mov_b32 v{ONE+r}, v{ONE}")
    A(f"    v_lshlrev_b32_e64 v{LW}, 3, s3", "LDS slot of this wave")
    if barA[1] == '1': A("    s_barrier")
    load(XA, 4, 2, "A2")
    if barA[2] == '1': A("    s_barrier")
    load(XA, 4, 3, "A3")
    nB = 0
    while nB < ilv:
        A("    s_barrier"); load(XB, 16, nB, f"B{nB}"); nB += 1
    A("    s_waitcnt lgkmcnt(0)")
    if not two:
        for src, dst, n in ((20, 30, 'A'), (22, 26, 'B')):
            A(f"    s_lshl_b32 s14, s{src}, 16"); A(f"    s_and_b32 s15, s{src}, s28"); A(f"    s_lshl_b32 s13, s{src+1}, 16")
            A("    v_mov_b32 v0, s14"); A("    v_mov_b32 v3, s15")
            A("    v_med3_f32 v0, v0, v3, s13", f"K of {n} = median of its first three values")
            A("    s_nop 0")
            A(f"    v_readfirstlane_b32 s{dst}, v0"); A(f"    v_readfirstlane_b32 s{dst+1}, v0")
    A("    s_lshr_b32 s13, s3, 1", "block j of this wave is channel 4j + wave/2")
    A("    s_lshl_b32 s13, s13, 4")
    for j in range(4):
        for base, dst, n in ((48, 32 + 4*j, "gamma"), (56, 34 + 4*j, "beta")):
            A(f"    s_lshr_b64 s[14:15], s[{base+2*j}:{base+2*j+1}], s13")
            A(f"    s_lshl_b32 s{dst}, s14, 16", f"{n} of block {j} as an f32 pair"); A(f"    s_lshl_b32 s{dst+1}, s14, 16")
    padleft = [pad]
    pr = lambda r: f"v[{r}:{r+1}]"
    def unpack(X, i):
        x = X + 4*i; f = F + 8*i
        for k in range(4):
            e = []
            for h in range(2):
                if X == XB and padleft[0] > 0: e.append("_e64"); padleft[0] -= 4
                else: e.append("")
            A(f"    v_lshlrev_b32{e[0]} v{f+2*k}, 16, v{x+k}"); A(f"    v_and_b32{e[1]} v{f+2*k+1}, s28, v{x+k}")
    def sub(i, src, c=None):
        f = F + 8*i
        for k in range(4): A(f"    v_pk_add_f32 {pr(f+2*k)}, {pr(f+2*k)}, {src} neg_lo:[0,1] neg_hi:[0,1]", c if k == 0 else None)
    def acc(i, s1, s2):
        f = F + 8*i
        for k in range(4):
            a1 = S1 + 2*(k & 1); a2 = S2 + 2*(k & 1)
            if s1:
                if i == 0 and k >= 2: A(f"    v_pk_add_f32 {pr(a1)}, {pr(f+2*k-4)}, {pr(f+2*k)}", "sum d" if k == 2 else None)
                elif i > 0: A(f"    v_pk_add_f32 {pr(a1)}, {pr(a1)}, {pr(f+2*k)}")
            if s2:
                if i == 0 and k < 2: A(f"    v_pk_mul_f32 {pr(a2)}, {pr(f+2*k)}, {pr(f+2*k)}", "sum d*d" if k == 0 else None)
                else: A(f"    v_pk_fma_f32 {pr(a2)}, {pr(f+2*k)}, {pr(f+2*k)}, {pr(a2)}")
    def stat(X, K, i):
        if mf: A(f"    v_mfma_f32_16x16x32_bf16 v[{S1}:{S1+3}], v[{ONE}:{ONE+3}], v[{X+4*i}:{X+4*i+3}], {'0' if i == 0 else f'v[{S1}:{S1+3}]'}", "column sums of x" if i == 0 else None)
        unpack(X, i)
        if mf: sub(i, f"s[{K}:{K+1}]", "d = x - K" if i == 0 else None); acc(i, 0, 1)
        elif two: acc(i, 1, 0)
        else: sub(i, f"s[{K}:{K+1}]", "d = x - K" if i == 0 else None); acc(i, 1, 1)
    D = "row_mask:0xf bank_mask:0xf"
    steps = [f"row_ror:{sh} {D}" for sh in (8, 4, 2, 1)] + ["row_bcast:15 row_mask:0xa bank_mask:0xf", "row_bcast:31 row_mask:0xc bank_mask:0xf"]
    def xwave(r, off, hook, n):
        A("    s_mov_b32 exec_lo, 0")
        A("    s_mov_b32 exec_hi, 0x80000000", "lane 63 holds the wave total")
        A(f"    ds_write_b64 v{LW}, {pr(r)} offset:{off}")
        A("    s_mov_b64 exec, -1")
        if hook: hook()
        A("    s_waitcnt lgkmcnt(0)")
        A("    s_barrier")
        if fast:
            A(f"    ds_read_b64 {pr(P)}, v{LR} offset:{off}")
            A("    s_waitcnt lgkmcnt(0)")
            A("    s_nop 0")
            for sh in (4, 2, 1):
                A(f"    v_add_f32_dpp v{P}, v{P}, v{P} row_ror:{sh} {D}")
                A(f"    v_add_f32_dpp v{P+1}, v{P+1}, v{P+1} row_ror:{sh} {D}")
                if sh != 1: A("    s_nop 0")
            return
        for j in range(4): A(f"    ds_read_b128 v[{P+4*j}:{P+4*j+3}], v{LR} offset:{off+16*j}")
        add = (lambda a, b: A(f"    v_pk_add_f32 {pr(a)}, {pr(a)}, {pr(b)}")) if n == 2 else (lambda a, b: A(f"    v_add_f32 v{a}, v{a}, v{b}"))
        for j in range(4):
            A(f"    s_waitcnt lgkmcnt({3-j})")
            add(P+4*j, P+4*j+2)
            if j % 2 == 1: add(P+4*j-4, P+4*j)
        add(P, P+8)
    def one(S):
        A(f"    v_pk_add_f32 {pr(S)}, {pr(S)}, {pr(S+2)}")
        A(f"    v_add_f32 v{S}, v{S}, v{S+1}")
        for m in steps:
            A("    s_nop 1"); A(f"    v_add_f32_dpp v{S}, v{S}, v{S} {m}")
    def reduce(K, off, hook=None):
        if two:
            one(S1); xwave(S1, 2*off, hook, 1)
            A(f"    v_mul_f32 v{P}, s24, v{P}", "mean")
            A(f"    v_cvt_pk_bf16_f32 v{T}, 0, v{P}", "mu = bf16(mean), as f32")
            A(f"    v_cvt_pk_bf16_f32 v{T+1}, 0, v{P}")
            for i in range(4): sub(i, pr(T), "d = x - mu" if i == 0 else None); acc(i, 0, 1)
            one(S2); xwave(S2, 2*off + 64, None, 1)
            A(f"    v_mul_f32 v{P}, s24, v{P}", "var")
        elif mf:
            Q = S1 + 1
            A(f"    v_pk_add_f32 {pr(S2)}, {pr(S2)}, {pr(S2+2)}")
            A(f"    v_add_f32 v{Q}, v{S2}, v{S2+1}")
            for m in steps[:4]:
                A(f"    v_add_f32_dpp v{S1}, v{S1}, v{S1} {m}"); A("    s_nop 0"); A(f"    v_add_f32_dpp v{Q}, v{Q}, v{Q} {m}")
            for m in steps[4:]:
                A("    s_nop 1"); A(f"    v_add_f32_dpp v{Q}, v{Q}, v{Q} {m}")
            xwave(S1, off, hook, 2)
            A(f"    v_pk_mul_f32 {pr(P)}, {pr(P)}, s[24:25]", "mean, E[d*d]")
            A(f"    v_subrev_f32 v{T+1}, s{K}, v{P}", "mean - K")
            A(f"    v_cvt_pk_bf16_f32 v{T}, 0, v{P}", "mu = bf16(mean), as f32")
            A(f"    v_fma_f32 v{P+1}, -v{T+1}, v{T+1}, v{P+1}", "variance about the mean")
            A(f"    v_sub_f32 v{P}, v{P}, v{T}", "mean - mu")
            A(f"    v_max_f32 v{P+1}, 0, v{P+1}")
            A(f"    v_subrev_f32 v{MU}, s{K}, v{T}", "mu - K")
            A(f"    v_fma_f32 v{P}, v{P}, v{P}, v{P+1}", "E[(x - mu)^2]")
        else:
            Q = S1 + 1
            A(f"    v_pk_add_f32 {pr(S1)}, {pr(S1)}, {pr(S1+2)}")
            A(f"    v_pk_add_f32 {pr(S2)}, {pr(S2)}, {pr(S2+2)}")
            A(f"    v_add_f32 v{S1}, v{S1}, v{S1+1}")
            A(f"    v_add_f32 v{Q}, v{S2}, v{S2+1}")
            for m in steps:
                A("    s_nop 0")
                A(f"    v_add_f32_dpp v{S1}, v{S1}, v{S1} {m}")
                A(f"    v_add_f32_dpp v{Q}, v{Q}, v{Q} {m}")
            xwave(S1, off, hook, 2)
            A(f"    v_pk_mul_f32 {pr(P)}, {pr(P)}, s[24:25]", "E[d] = mean - K, E[d*d]")
            A(f"    v_add_f32 v{T}, s{K}, v{P}", "mean")
            A(f"    v_fma_f32 v{P+1}, -v{P}, v{P}, v{P+1}", "variance about the mean")
            A(f"    v_cvt_pk_bf16_f32 v{T}, 0, v{T}", "mu = bf16(mean), as f32")
            A(f"    v_max_f32 v{P+1}, 0, v{P+1}")
            A(f"    v_subrev_f32 v{MU}, s{K}, v{T}", "mu - K")
            A(f"    v_sub_f32 v{P}, v{P}, v{MU}", "mean - mu")
            A(f"    v_fma_f32 v{P}, v{P}, v{P}, v{P+1}", "E[(x - mu)^2]")
        A(f"    v_cvt_pk_bf16_f32 v{P}, 0, v{P}")
        A(f"    v_add_f32 v{P}, 0x3727c5ac, v{P}", "+ 1e-5")
        A(f"    v_cvt_pk_bf16_f32 v{P}, 0, v{P}")
        A(f"    v_sqrt_f32 v{P}, v{P}")
        A(f"    v_mov_b32 v{MU+1}, v{MU}" if not two else "    s_nop 0")
        A(f"    v_cvt_pk_bf16_f32 v{P}, 0, v{P}", "sd")
        A(f"    v_rcp_f32 v{R}, v{P}")
        A(f"    v_rcp_f32 v{R+1}, v{P}")
        A("    s_nop 0")
    order = [3, 2, 1, 0]
    def outp(X, base):
        for i in order:
            f = F + 8*i; o = X + 4*i
            A(f"    v_pk_mul_f32 {pr(SC)}, {pr(R)}, s[{32+4*i}:{33+4*i}]", "scale = gamma / sd")
            if two:
                for k in range(4): A(f"    v_pk_fma_f32 {pr(f+2*k)}, {pr(f+2*k)}, {pr(SC)}, s[{34+4*i}:{35+4*i}]")
            else:
                A(f"    v_pk_fma_f32 {pr(SH)}, {pr(MU)}, {pr(SC)}, s[{34+4*i}:{35+4*i}] neg_lo:[1,0,0] neg_hi:[1,0,0]", "shift = beta - (mu - K) * scale")
                for k in range(4): A(f"    v_pk_fma_f32 {pr(f+2*k)}, {pr(f+2*k)}, {pr(SC)}, {pr(SH)}")
            for k in range(4): A(f"    v_cvt_pk_bf16_f32 v{o+k}, v{f+2*k}, v{f+2*k+1}")
            if base: store(X, base, i)
    A("    ; ---------------- group A: statistics (each arriving block makes room for the next load of B)")
    for i in range(NL):
        A(f"    s_waitcnt vmcnt({NL-1-i+nB})", f"A{i} landed")
        if nB < NL: load(XB, 16, nB, f"B{nB}"); nB += 1
        stat(XA, 30, i)
    reduce(30, 0)
    A("    ; ---------------- group A: outputs, packed into A's raw registers")
    if sched == 'e': outp(XA, 10); n = NL; sc = [0] * 6
    else: sc = [int(c) for c in sched.ljust(6, '0')]; assert sum(sc) == 4; outp(XA, None); n = 0
    pend = list(order)
    def rel(c):
        nonlocal n
        for _ in range(c):
            i = pend.pop(0); store(XA, 10, i, f"out A{i}"); n += 1
    rel(sc[0])
    A("    ; ---------------- group B: statistics; A's stores go out behind B's last loads")
    for i in range(NL):
        A(f"    s_waitcnt vmcnt({NL-1-i+n})", f"B{i} landed"); rel(sc[i+1]); stat(XB, 26, i)
    reduce(26, 64, lambda: rel(sc[5]))
    outp(XB, 18)
    A("L_end:")
    A("    s_endpgm")
    return L, NV

def gen(st='A', sched='00022', barA='011', ilv=1, vg=136, skew=0, ld='-', two=0, fast=0, pad=0, mf=0):
    nt = 2
    if pad < 0:
        for p_ in range(0, 97, 4):
            t = gen(st, sched, barA, ilv, vg, skew, ld, two, fast, p_, mf).split("\n")
            if 'vmcnt' in t[t.index("L_s2:") + 1]: return "\n".join(t)
        pad = 0
    L, NV = body(st, sched, barA, ilv, nt, skew, ld, two, fast, pad, mf)
    for k in range(1, nt + 1):
        off = sizes(L)
        cand = [n for n in range(len(L)) if k * WIN <= off[n] + 4 < k * WIN + 56 and not L[n].strip().startswith(';') and not L[n].endswith(':')]
        pref = [n for n in cand if 's_waitcnt' in L[n]] or [n for n in cand if 's_nop' in L[n]]
        n = (pref or cand)[0]
        L[n:n] = [f"    s_branch L_s{k}", f"L_t{k}:", f"{'    s_branch L_back':<96}; I-cache visit {k} ends here", f"L_s{k}:"]
    assert sizes(L)[-1] + 4 <= 3 * WIN
    H = [HEADER.rstrip(), f"; @launch grid=(256,1,1) block=(512,1,1) lds={256 if two else 128}", '.amdgcn_target "amdgcn-amd-amdhsa--gfx950"',
         ".text", f".globl {NAME}", ".p2align 8", f".type {NAME},@function", f"{NAME}:"]
    nv = max(vg, (NV + 7) // 8 * 8)
    E = ['.section .rodata,"a"', ".p2align 6", f".amdhsa_kernel {NAME}", f"  .amdhsa_next_free_vgpr {nv}", "  .amdhsa_next_free_sgpr 64",
         f"  .amdhsa_accum_offset {nv}", "  .amdhsa_group_segment_fixed_size 0", "  .amdhsa_kernarg_size 48", "  .amdhsa_user_sgpr_count 2",
         "  .amdhsa_user_sgpr_kernarg_segment_ptr 1", "  .amdhsa_system_sgpr_workgroup_id_x 1", "  .amdhsa_float_denorm_mode_32 3", ".end_amdhsa_kernel"]
    return "\n".join(H + L + E) + "\n"

if __name__ == "__main__":
    args = sys.argv[1:]; out = args[args.index('-o') + 1]; kw = {}
    for a in args:
        if '=' in a:
            k, v = a.split('=')
            kw[k] = v if k in ('st', 'sched', 'barA', 'ld') else int(v)
    open(out, 'w').write(gen(**kw))
```

```python
import sys
from gen5 import sizes, POL, WIN, NAME

HEADER = """; Kernarg layout for this problem (48 bytes, ptrs only, base s[0:1]):
;   offset   0: d_in[0] x  shape=(16, 512, 32, 32) dtype=bfloat16 strides=(1048576, 2048, 64, 2) contiguous=True
;   offset   8: d_in[1] g  shape=(512,) dtype=bfloat16 strides=(2,) contiguous=True
;   offset  16: d_in[2] b  shape=(512,) dtype=bfloat16 strides=(2,) contiguous=True
;
; channels, batch + 8).  Every byte of x is read once, into registers: a wave holds one 1 KiB row of
; Pipeline: the loads A0..A3, B0..B3 form one sequential stream per CU (the barriers keep the waves
; in step); A's outputs are stored while the last blocks of B arrive, B's outputs follow.
; Statistics: shifted-data algorithm.  d = x - K with K one of the group's own values; mean and
"""

def body(st, sched, barA, ilv, ntouch, skew, ld, two, fast, pad, mf, gx, fx, x12, x13, x14, x10, x11, mp, late, tp, dec):
    W, NL = 8, 4
    L = []
    def A(s, c=None): L.append(s if c is None else f"{s:<96}; {c}")
    LR, LW = 1, 2
    S1, S2 = 4, 8
    AD = 12
    T = 16
    P = 20
    XA = 36; XB = 52; F = 68
    NV = F + 32
    ONE = NV
    if mf: NV += 4
    R, MU, SC, SH = 4, 6, 8, 10
    if skew:
        A("    s_getreg_b32 s13, hwreg(HW_REG_XCC_ID)"); A("    s_and_b32 s13, s13, 4")
        A("    s_cbranch_scc%d L_nsk" % (0 if skew > 0 else 1)); A(f"    s_sleep {abs(skew)}"); A("L_nsk:")
    A("    s_load_dwordx8 s[4:11], s[0:1], 0", "x, g, b, out")
    A("    v_readfirstlane_b32 s3, v0")
    A("    s_cmp_ge_u32 s2, 256")
    A("    s_cbranch_scc1 L_end", "over-launched workgroups leave")
    A("    s_lshr_b32 s3, s3, 6", "wave id")
    def touch():
        A("    ; An instruction-cache miss brings in 1088 bytes.  While the kernarg load is in flight the two")
        A("    ; youngest waves visit the later windows of this code, so nobody misses behind the data stream.")
        for k in range(ntouch, 0, -1):
            A(f"    s_cmp_eq_u32 s3, {W - 1 - (ntouch - k)}")
            A(f"    s_cbranch_scc1 L_t{k}")
        A("L_back:")
    if tp == 0: touch()
    sb = 8
    if gx:
        if len(gx) == 8: gx = gx + 'S'
        assert sorted(gx) == list('01234567S')
        sb = gx.index('S')
        d = 0; first = True
        while d < 9:
            if gx[d] == 'S': d += 1; continue
            n = 1
            while d + n < 9 and gx[d+n] != 'S' and int(gx[d+n]) == int(gx[d]) + n: n += 1
            if first:
                A(f"    s_bfe_u32 s12, s2, {(n << 16) + int(gx[d]):#x}", "group A = bit permutation of the workgroup id (locality only)")
                if d: A(f"    s_lshl_b32 s12, s12, {d}")
                first = False
            else:
                A(f"    s_bfe_u32 s13, s2, {(n << 16) + int(gx[d]):#x}")
                A(f"    s_lshl_b32 s13, s13, {d}"); A("    s_or_b32 s12, s12, s13")
            d += n
        A("    s_mov_b32 s2, s12")
    if fx:
        assert sb == 8
        A(f"    s_and_b32 s13, s2, {fx}"); A("    s_bcnt1_i32_b32 s13, s13"); A("    s_and_b32 s13, s13, 1")
        A("    s_cselect_b32 s64, 0xff800000, 0x800000".replace("0xff800000, 0x800000", "-1, 0").replace("s64", "s65"))
        A("    s_lshl_b32 s13, s13, 8"); A("    s_or_b32 s2, s2, s13")
        A("    s_and_b32 s64, s65, 0xff000000"); A("    s_or_b32 s64, s64, 0x800000")
    BOFF = 1 << (15 + sb)
    sepgb = sb < 5
    post = []
    Bq = lambda t, c=None: post.append((t, c))
    if mp:
        A("    s_and_b32 s13, s2, 7", "group A = bit permutation of the workgroup id (memory locality only)")
        A("    s_mul_i32 s13, s13, 0x120000")
        A("    s_bfe_u32 s66, s2, 0x20003")
        A("    s_and_b32 s13, s13, 0x460000", "wg bits 0,1,2 -> byte-address bits 17,18,22")
        A(f"    s_mul_i32 s15, s66, {0x8400 if mp == 1 else 0x8000:#x}", "wg bits 3,4 -> bits 15,16" + (" (and the order of the 1 KiB rows, bits 10,11)" if mp == 1 else ""))
        A("    s_and_b32 s12, s2, 0xe0")
        A("    s_lshl_b32 s12, s12, 14", "wg bits 5,6,7 -> bits 19,20,21")
        A(f"    v_lshlrev_b32 v{AD}, 4, v0")
        A("    s_or_b32 s12, s12, s13")
        A("    s_or_b32 s12, s12, s15")
        A(f"    v_xor_b32 v{AD}, s12, v{AD}", "lane offset in block 0")
        Bq("    s_lshr_b32 s29, s12, 10")
        Bq("    s_and_b32 s29, s29, 0x3e0", "byte offset of the group's channels in g / b")
        if mp == 1: Bq("    s_and_b32 s12, s12, 0xffff8000", "byte base of group A"); x11 = 1
        for k in range(1, 4): Bq(f"    v_add_u32 v{AD+k}, {8192*k}, v{AD}")
    else:
        A("    s_lshl_b32 s12, s2, 15", "byte base of group A")
        xr = x10 or x11 or x12 or x13 or x14
        if xr:
            first = True
            for b, m in ((0, x10), (1, x11), (2, x12), (3, x13), (4, x14)):
                if not m: continue
                if m & (m - 1): A(f"    s_and_b32 s13, s2, {m}"); A("    s_bcnt1_i32_b32 s13, s13"); A("    s_and_b32 s13, s13, 1")
                else: A(f"    s_bfe_u32 s13, s2, {0x10000 + m.bit_length() - 1:#x}")
                if first: A(f"    s_lshl_b32 s66, s13, {b}"); first = False
                else: A(f"    s_lshl_b32 s13, s13, {b}"); A("    s_or_b32 s66, s66, s13")
            A("    s_lshl_b32 s13, s66, 10"); A("    s_or_b32 s13, s13, s12")
            A(f"    v_lshlrev_b32 v{AD}, 4, v0"); A(f"    v_xor_b32 v{AD}, s13, v{AD}", "lane offset in the first block visited")
        else:
            A(f"    v_lshl_add_u32 v{AD}, v0, 4, s12", "lane offset in block 0")
        Bq("    s_and_b32 s29, s2, 31")
        Bq("    s_lshl_b32 s29, s29, 5", "byte offset of the group's channels in g / b")
        for k in range(1, 4): Bq(f"    v_xor_b32 v{AD+k}, {8192*k}, v{AD}")
    if not late:
        for t, c in post: A(t, c)
    if tp == 1: touch()
    A("    s_waitcnt lgkmcnt(0)")
    def load(X, base, i, c=None): A(f"    global_load_dwordx4 v[{X+4*i}:{X+4*i+3}], v{AD+i}, s[{base}:{base+1}]{POL[ld]}", c)
    def store(X, base, i, c=None): A(f"    global_store_dwordx4 v{AD+i}, v[{X+4*i}:{X+4*i+3}], s[{base}:{base+1}]{POL[st]}", c)
    load(XA, 4, 0, "A0")
    if late:
        for t, c in post: A(t, c)
    A("    s_load_dwordx8 s[48:55], s[6:7], s29", "gamma, 16 channels")
    A("    s_load_dwordx8 s[56:63], s[8:9], s29", "beta")
    A(f"    s_add_u32 s16, s4, {'s64' if fx else hex(BOFF)}", "x of group B"); A(f"    s_addc_u32 s17, s5, {'s65' if fx else 0}")
    if not two:
        A("    s_add_u32 s14, s4, s12"); A("    s_addc_u32 s15, s5, 0")
        A("    s_load_dwordx2 s[20:21], s[14:15], 0", "first elements of A")
        A("    s_add_u32 s26, s16, s12"); A("    s_addc_u32 s27, s17, 0")
        A("    s_load_dwordx2 s[22:23], s[26:27], 0", "first elements of B")
    if sepgb:
        A(f"    s_add_u32 s13, s29, {32 << sb}")
        A("    s_load_dwordx8 s[64:71], s[6:7], s13", "gamma of B")
        A("    s_load_dwordx8 s[72:79], s[8:9], s13", "beta of B")
    if barA[0] == '1': A("    s_barrier")
    load(XA, 4, 1, "A1")
    A(f"    s_add_u32 s18, s10, {'s64' if fx else hex(BOFF)}", "out of group B"); A(f"    s_addc_u32 s19, s11, {'s65' if fx else 0}")
    A("    s_mov_b32 s28, 0xffff0000")
    A("    s_mov_b32 s24, 0x38800000", "1/16384")
    A("    s_mov_b32 s25, 0x38800000")
    if fast:
        A(f"    v_and_b32 v{LR}, 7, v0"); A(f"    v_lshlrev_b32 v{LR}, 3, v{LR}", "lane l gathers the partial sums of wave l & 7")
    else: A(f"    v_mov_b32 v{LR}, 0")
    if mf:
        A(f"    v_mov_b32 v{ONE}, 0x3f803f80", "bf16 ones")
        for r in range(1, 4): A(f"    v_mov_b32 v{ONE+r}, v{ONE}")
    A(f"    v_lshlrev_b32_e64 v{LW}, 3, s3", "LDS slot of this wave")
    if barA[1] == '1': A("    s_barrier")
    load(XA, 4, 2, "A2")
    if barA[2] == '1': A("    s_barrier")
    load(XA, 4, 3, "A3")
    nB = 0
    while nB < ilv:
        A("    s_barrier"); load(XB, 16, nB, f"B{nB}"); nB += 1
    def kset(src, dst, n):
        if two: return
        A(f"    s_lshl_b32 s14, s{src}, 16"); A(f"    s_and_b32 s15, s{src}, s28"); A(f"    s_lshl_b32 s13, s{src+1}, 16")
        A("    v_mov_b32 v0, s14"); A("    v_mov_b32 v3, s15")
        A("    v_med3_f32 v0, v0, v3, s13", f"K of {n} = median of its first three values")
        A("    s_nop 0")
        A(f"    v_readfirstlane_b32 s{dst}, v0"); A(f"    v_readfirstlane_b32 s{dst+1}, v0")
    def gbs(gsrc, bsrc):
        for j in range(4):
            if x13 or x14:
                A(f"    s_xor_b32 m0, s67, {2*j}"); A("    s_nop 0")
            for base, dst, n in ((gsrc, 32 + 4*j, "gamma"), (bsrc, 34 + 4*j, "beta")):
                if x13 or x14:
                    A(f"    s_movrels_b64 s[14:15], s[{base}:{base+1}]")
                    A(f"    s_lshr_b64 s[14:15], s[14:15], s13")
                else:
                    A(f"    s_lshr_b64 s[14:15], s[{base+2*j}:{base+2*j+1}], s13")
                A(f"    s_lshl_b32 s{dst}, s14, 16", f"{n} of block {j} as an f32 pair"); A(f"    s_lshl_b32 s{dst+1}, s14, 16")
    def gball():
        A("    s_lshr_b32 s13, s3, 1", "block j of this wave is channel 4j + row/2")
        A("    s_lshl_b32 s13, s13, 4")
        if x11 or x12:
            A("    s_and_b32 s14, s66, 6"); A("    s_lshl_b32 s14, s14, 3"); A("    s_xor_b32 s13, s13, s14")
        if x13 or x14: A("    s_lshr_b32 s67, s66, 2"); A("    s_and_b32 s67, s67, 6")
        gbs(48, 56)
    if not dec:
        A("    s_waitcnt lgkmcnt(0)")
        kset(20, 30, 'A'); kset(22, 26, 'B'); gball()
    padleft = [pad]
    pr = lambda r: f"v[{r}:{r+1}]"
    def unpack(X, i):
        x = X + 4*i; f = F + 8*i
        for k in range(4):
            e = []
            for h in range(2):
                if X == XB and padleft[0] > 0: e.append("_e64"); padleft[0] -= 4
                else: e.append("")
            A(f"    v_lshlrev_b32{e[0]} v{f+2*k}, 16, v{x+k}"); A(f"    v_and_b32{e[1]} v{f+2*k+1}, s28, v{x+k}")
    def sub(i, src, c=None):
        f = F + 8*i
        for k in range(4): A(f"    v_pk_add_f32 {pr(f+2*k)}, {pr(f+2*k)}, {src} neg_lo:[0,1] neg_hi:[0,1]", c if k == 0 else None)
    def acc(i, s1, s2):
        f = F + 8*i
        for k in range(4):
            a1 = S1 + 2*(k & 1); a2 = S2 + 2*(k & 1)
            if s1:
                if i == 0 and k >= 2: A(f"    v_pk_add_f32 {pr(a1)}, {pr(f+2*k-4)}, {pr(f+2*k)}", "sum d" if k == 2 else None)
                elif i > 0: A(f"    v_pk_add_f32 {pr(a1)}, {pr(a1)}, {pr(f+2*k)}")
            if s2:
                if i == 0 and k < 2: A(f"    v_pk_mul_f32 {pr(a2)}, {pr(f+2*k)}, {pr(f+2*k)}", "sum d*d" if k == 0 else None)
                else: A(f"    v_pk_fma_f32 {pr(a2)}, {pr(f+2*k)}, {pr(f+2*k)}, {pr(a2)}")
    def stat(X, K, i):
        if mf: A(f"    v_mfma_f32_16x16x32_bf16 v[{S1}:{S1+3}], v[{ONE}:{ONE+3}], v[{X+4*i}:{X+4*i+3}], {'0' if i == 0 else f'v[{S1}:{S1+3}]'}", "column sums of x" if i == 0 else None)
        unpack(X, i)
        if mf: sub(i, f"s[{K}:{K+1}]", "d = x - K" if i == 0 else None); acc(i, 0, 1)
        elif two: acc(i, 1, 0)
        else: sub(i, f"s[{K}:{K+1}]", "d = x - K" if i == 0 else None); acc(i, 1, 1)
    D = "row_mask:0xf bank_mask:0xf"
    steps = [f"row_ror:{sh} {D}" for sh in (8, 4, 2, 1)] + ["row_bcast:15 row_mask:0xa bank_mask:0xf", "row_bcast:31 row_mask:0xc bank_mask:0xf"]
    def xwave(r, off, hook, n):
        A("    s_mov_b32 exec_lo, 0")
        A("    s_mov_b32 exec_hi, 0x80000000", "lane 63 holds the wave total")
        A(f"    ds_write_b64 v{LW}, {pr(r)} offset:{off}")
        A("    s_mov_b64 exec, -1")
        if hook: hook()
        A("    s_waitcnt lgkmcnt(0)")
        A("    s_barrier")
        if fast:
            A(f"    ds_read_b64 {pr(P)}, v{LR} offset:{off}")
            A("    s_waitcnt lgkmcnt(0)")
            A("    s_nop 0")
            for sh in (4, 2, 1):
                A(f"    v_add_f32_dpp v{P}, v{P}, v{P} row_ror:{sh} {D}")
                A(f"    v_add_f32_dpp v{P+1}, v{P+1}, v{P+1} row_ror:{sh} {D}")
                if sh != 1: A("    s_nop 0")
            return
        for j in range(4): A(f"    ds_read_b128 v[{P+4*j}:{P+4*j+3}], v{LR} offset:{off+16*j}")
        add = (lambda a, b: A(f"    v_pk_add_f32 {pr(a)}, {pr(a)}, {pr(b)}")) if n == 2 else (lambda a, b: A(f"    v_add_f32 v{a}, v{a}, v{b}"))
        for j in range(4):
            A(f"    s_waitcnt lgkmcnt({3-j})")
            add(P+4*j, P+4*j+2)
            if j % 2 == 1: add(P+4*j-4, P+4*j)
        add(P, P+8)
    def one(S):
        A(f"    v_pk_add_f32 {pr(S)}, {pr(S)}, {pr(S+2)}")
        A(f"    v_add_f32 v{S}, v{S}, v{S+1}")
        for m in steps:
            A("    s_nop 1"); A(f"    v_add_f32_dpp v{S}, v{S}, v{S} {m}")
    def reduce(K, off, hook=None):
        if two:
            one(S1); xwave(S1, 2*off, hook, 1)
            A(f"    v_mul_f32 v{P}, s24, v{P}", "mean")
            A(f"    v_cvt_pk_bf16_f32 v{T}, 0, v{P}", "mu = bf16(mean), as f32")
            A(f"    v_cvt_pk_bf16_f32 v{T+1}, 0, v{P}")
            for i in range(4): sub(i, pr(T), "d = x - mu" if i == 0 else None); acc(i, 0, 1)
            one(S2); xwave(S2, 2*off + 64, None, 1)
            A(f"    v_mul_f32 v{P}, s24, v{P}", "var")
        elif mf:
            Q = S1 + 1
            A(f"    v_pk_add_f32 {pr(S2)}, {pr(S2)}, {pr(S2+2)}")
            A(f"    v_add_f32 v{Q}, v{S2}, v{S2+1}")
            for m in steps[:4]:
                A(f"    v_add_f32_dpp v{S1}, v{S1}, v{S1} {m}"); A("    s_nop 0"); A(f"    v_add_f32_dpp v{Q}, v{Q}, v{Q} {m}")
            for m in steps[4:]:
                A("    s_nop 1"); A(f"    v_add_f32_dpp v{Q}, v{Q}, v{Q} {m}")
            xwave(S1, off, hook, 2)
            A(f"    v_pk_mul_f32 {pr(P)}, {pr(P)}, s[24:25]", "mean, E[d*d]")
            A(f"    v_subrev_f32 v{T+1}, s{K}, v{P}", "mean - K")
            A(f"    v_cvt_pk_bf16_f32 v{T}, 0, v{P}", "mu = bf16(mean), as f32")
            A(f"    v_fma_f32 v{P+1}, -v{T+1}, v{T+1}, v{P+1}", "variance about the mean")
            A(f"    v_sub_f32 v{P}, v{P}, v{T}", "mean - mu")
            A(f"    v_max_f32 v{P+1}, 0, v{P+1}")
            A(f"    v_subrev_f32 v{MU}, s{K}, v{T}", "mu - K")
            A(f"    v_fma_f32 v{P}, v{P}, v{P}, v{P+1}", "E[(x - mu)^2]")
        else:
            Q = S1 + 1
            A(f"    v_pk_add_f32 {pr(S1)}, {pr(S1)}, {pr(S1+2)}")
            A(f"    v_pk_add_f32 {pr(S2)}, {pr(S2)}, {pr(S2+2)}")
            A(f"    v_add_f32 v{S1}, v{S1}, v{S1+1}")
            A(f"    v_add_f32 v{Q}, v{S2}, v{S2+1}")
            for m in steps:
                A("    s_nop 0")
                A(f"    v_add_f32_dpp v{S1}, v{S1}, v{S1} {m}")
                A(f"    v_add_f32_dpp v{Q}, v{Q}, v{Q} {m}")
            xwave(S1, off, hook, 2)
            A(f"    v_pk_mul_f32 {pr(P)}, {pr(P)}, s[24:25]", "E[d] = mean - K, E[d*d]")
            A(f"    v_add_f32 v{T}, s{K}, v{P}", "mean")
            A(f"    v_fma_f32 v{P+1}, -v{P}, v{P}, v{P+1}", "variance about the mean")
            A(f"    v_cvt_pk_bf16_f32 v{T}, 0, v{T}", "mu = bf16(mean), as f32")
            A(f"    v_max_f32 v{P+1}, 0, v{P+1}")
            A(f"    v_subrev_f32 v{MU}, s{K}, v{T}", "mu - K")
            A(f"    v_sub_f32 v{P}, v{P}, v{MU}", "mean - mu")
            A(f"    v_fma_f32 v{P}, v{P}, v{P}, v{P+1}", "E[(x - mu)^2]")
        A(f"    v_cvt_pk_bf16_f32 v{P}, 0, v{P}")
        A(f"    v_add_f32 v{P}, 0x3727c5ac, v{P}", "+ 1e-5")
        A(f"    v_cvt_pk_bf16_f32 v{P}, 0, v{P}")
        A(f"    v_sqrt_f32 v{P}, v{P}")
        A(f"    v_mov_b32 v{MU+1}, v{MU}" if not two else "    s_nop 0")
        A(f"    v_cvt_pk_bf16_f32 v{P}, 0, v{P}", "sd")
        A(f"    v_rcp_f32 v{R}, v{P}")
        A(f"    v_rcp_f32 v{R+1}, v{P}")
        A("    s_nop 0")
    order = [3, 2, 1, 0]
    def outp(X, base):
        for i in order:
            f = F + 8*i; o = X + 4*i
            A(f"    v_pk_mul_f32 {pr(SC)}, {pr(R)}, s[{32+4*i}:{33+4*i}]", "scale = gamma / sd")
            if two:
                for k in range(4): A(f"    v_pk_fma_f32 {pr(f+2*k)}, {pr(f+2*k)}, {pr(SC)}, s[{34+4*i}:{35+4*i}]")
            else:
                A(f"    v_pk_fma_f32 {pr(SH)}, {pr(MU)}, {pr(SC)}, s[{34+4*i}:{35+4*i}] neg_lo:[1,0,0] neg_hi:[1,0,0]", "shift = beta - (mu - K) * scale")
                for k in range(4): A(f"    v_pk_fma_f32 {pr(f+2*k)}, {pr(f+2*k)}, {pr(SC)}, {pr(SH)}")
            for k in range(4): A(f"    v_cvt_pk_bf16_f32 v{o+k}, v{f+2*k}, v{f+2*k+1}")
            if base: store(X, base, i)
    A("    ; ---------------- group A: statistics")
    for i in range(NL):
        A(f"    s_waitcnt vmcnt({NL-1-i+nB})", f"A{i} landed")
        if nB < NL: load(XB, 16, nB, f"B{nB}"); nB += 1
        if dec and i == 0: A("    s_waitcnt lgkmcnt(0)"); kset(20, 30, 'A')
        stat(XA, 30, i)
        if dec and i == 1: kset(22, 26, 'B')
        if dec and i == 2: gball()
    reduce(30, 0)
    A("    ; ---------------- group A: outputs, packed into A's raw registers")
    if sched == 'e': outp(XA, 10); n = NL; sc = [0] * 6
    else: sc = [int(c) for c in sched.ljust(6, '0')]; assert sum(sc) == 4; outp(XA, None); n = 0
    pend = list(order)
    def rel(c):
        nonlocal n
        for _ in range(c):
            i = pend.pop(0); store(XA, 10, i, f"out A{i}"); n += 1
    rel(sc[0])
    if sepgb: gbs(64, 72)
    A("    ; ---------------- group B: statistics; A's stores go out behind B's last loads")
    for i in range(NL):
        A(f"    s_waitcnt vmcnt({NL-1-i+n})", f"B{i} landed"); rel(sc[i+1]); stat(XB, 26, i)
    reduce(26, 64, lambda: rel(sc[5]))
    outp(XB, 18)
    A("L_end:")
    A("    s_endpgm")
    return L, NV

def gen(st='A', sched='00022', barA='011', ilv=1, vg=136, skew=0, ld='-', two=0, fast=0, pad=0, mf=0, gx='', fx=0, x12=0, x13=0, x14=0, x10=0, x11=0, mp=0, late=0, tp=0, dec=0):
    nt = 2
    if pad < 0:
        for p_ in range(0, 97, 4):
            t = gen(st, sched, barA, ilv, vg, skew, ld, two, fast, p_, mf, gx, fx, x12, x13, x14, x10, x11, mp, late, tp, dec).split("\n")
            if 'vmcnt' in t[t.index("L_s2:") + 1]: return "\n".join(t)
        pad = 0
    L, NV = body(st, sched, barA, ilv, nt, skew, ld, two, fast, pad, mf, gx, fx, x12, x13, x14, x10, x11, mp, late, tp, dec)
    for k in range(1, nt + 1):
        off = sizes(L)
        cand = [n for n in range(len(L)) if k * WIN <= off[n] + 4 < k * WIN + 56 and not L[n].strip().startswith(';') and not L[n].endswith(':')]
        pref = [n for n in cand if 's_waitcnt' in L[n]] or [n for n in cand if 's_nop' in L[n]]
        n = (pref or cand)[0]
        L[n:n] = [f"    s_branch L_s{k}", f"L_t{k}:", f"{'    s_branch L_back':<96}; I-cache visit {k} ends here", f"L_s{k}:"]
    assert sizes(L)[-1] + 4 <= 3 * WIN
    H = [HEADER.rstrip(), f"; @launch grid=(256,1,1) block=(512,1,1) lds={256 if two else 128}", '.amdgcn_target "amdgcn-amd-amdhsa--gfx950"',
         ".text", f".globl {NAME}", ".p2align 8", f".type {NAME},@function", f"{NAME}:"]
    nv = max(vg, (NV + 7) // 8 * 8)
    E = ['.section .rodata,"a"', ".p2align 6", f".amdhsa_kernel {NAME}", f"  .amdhsa_next_free_vgpr {nv}", "  .amdhsa_next_free_sgpr 72",
         f"  .amdhsa_accum_offset {nv}", "  .amdhsa_group_segment_fixed_size 0", "  .amdhsa_kernarg_size 48", "  .amdhsa_user_sgpr_count 2",
         "  .amdhsa_user_sgpr_kernarg_segment_ptr 1", "  .amdhsa_system_sgpr_workgroup_id_x 1", "  .amdhsa_float_denorm_mode_32 3", ".end_amdhsa_kernel"]
    return "\n".join(H + L + E) + "\n"

if __name__ == "__main__":
    args = sys.argv[1:]; out = args[args.index('-o') + 1]; kw = {}
    for a in args:
        if '=' in a:
            k, v = a.split('=')
            kw[k] = v if k in ('st', 'sched', 'barA', 'ld', 'gx') else int(v)
    open(out, 'w').write(gen(**kw))
```

```python
import sys
from gen5 import sizes, POL, WIN, NAME

HEADER = """; Kernarg layout for this problem (48 bytes, ptrs only, base s[0:1]):
;   offset   0: d_in[0] x  shape=(16, 512, 32, 32) dtype=bfloat16 strides=(1048576, 2048, 64, 2) contiguous=True
;   offset   8: d_in[1] g  shape=(512,) dtype=bfloat16 strides=(2,) contiguous=True
;   offset  16: d_in[2] b  shape=(512,) dtype=bfloat16 strides=(2,) contiguous=True
;
; channels, batch + 8).  Every byte of x is read once, into registers: a wave holds one 1 KiB row of
; Pipeline: the loads A0..A3, B0..B3 form one sequential stream per CU (the barriers keep the waves
; in step); A's outputs are stored while the last blocks of B arrive, B's outputs follow.
; Statistics: shifted-data algorithm.  d = x - K with K one of the group's own values; mean and
"""

def body(st, sched, barA, ilv, ntouch, skew, ld, two, fast, pad, mf, gx, fx, x12, x13, x14, x10, x11, mp, late, tp, dec):
    W, NL = 8, 4
    L = []
    def A(s, c=None): L.append(s if c is None else f"{s:<96}; {c}")
    LR, LW = 1, 2
    S1, S2 = 4, 8
    AD = 12
    T = 16
    P = 20
    XA = 36; XB = 52; F = 68
    NV = F + 32
    ONE = NV
    if mf: NV += 4
    R, MU, SC, SH = 4, 6, 8, 10
    if skew >= 100:
        A("    s_getreg_b32 s13, hwreg(HW_REG_XCC_ID)")
        for b, c in enumerate(reversed(str(skew)[-3:])):
            if int(c):
                A(f"    s_bitcmp1_b32 s13, {b}"); A(f"    s_cbranch_scc0 L_nsk{b}"); A(f"    s_sleep {2*int(c)}"); A(f"L_nsk{b}:")
    elif skew:
        A("    s_getreg_b32 s13, hwreg(HW_REG_XCC_ID)"); A("    s_and_b32 s13, s13, 4")
        A("    s_cbranch_scc%d L_nsk" % (0 if skew > 0 else 1)); A(f"    s_sleep {abs(skew)}"); A("L_nsk:")
    A("    s_load_dwordx8 s[4:11], s[0:1], 0", "x, g, b, out")
    A("    v_readfirstlane_b32 s3, v0")
    A("    s_cmp_ge_u32 s2, 256")
    A("    s_cbranch_scc1 L_end", "over-launched workgroups leave")
    A("    s_lshr_b32 s3, s3, 6", "wave id")
    def touch():
        A("    ; An instruction-cache miss brings in 1088 bytes.  While the kernarg load is in flight the two")
        A("    ; youngest waves visit the later windows of this code, so nobody misses behind the data stream.")
        for k in range(ntouch, 0, -1):
            A(f"    s_cmp_eq_u32 s3, {W - 1 - (ntouch - k)}")
            A(f"    s_cbranch_scc1 L_t{k}")
        A("L_back:")
    if tp == 0: touch()
    sb = 8
    if gx:
        if len(gx) == 8: gx = gx + 'S'
        assert sorted(gx) == list('01234567S')
        sb = gx.index('S')
        d = 0; first = True
        while d < 9:
            if gx[d] == 'S': d += 1; continue
            n = 1
            while d + n < 9 and gx[d+n] != 'S' and int(gx[d+n]) == int(gx[d]) + n: n += 1
            if first:
                A(f"    s_bfe_u32 s12, s2, {(n << 16) + int(gx[d]):#x}", "group A = bit permutation of the workgroup id (locality only)")
                if d: A(f"    s_lshl_b32 s12, s12, {d}")
                first = False
            else:
                A(f"    s_bfe_u32 s13, s2, {(n << 16) + int(gx[d]):#x}")
                A(f"    s_lshl_b32 s13, s13, {d}"); A("    s_or_b32 s12, s12, s13")
            d += n
        A("    s_mov_b32 s2, s12")
    if fx:
        assert sb == 8
        A(f"    s_and_b32 s13, s2, {fx}"); A("    s_bcnt1_i32_b32 s13, s13"); A("    s_and_b32 s13, s13, 1")
        A("    s_cselect_b32 s64, 0xff800000, 0x800000".replace("0xff800000, 0x800000", "-1, 0").replace("s64", "s65"))
        A("    s_lshl_b32 s13, s13, 8"); A("    s_or_b32 s2, s2, s13")
        A("    s_and_b32 s64, s65, 0xff000000"); A("    s_or_b32 s64, s64, 0x800000")
    BOFF = 1 << (15 + sb)
    sepgb = sb < 5
    post = []
    Bq = lambda t, c=None: post.append((t, c))
    if mp:
        A("    s_and_b32 s13, s2, 7", "group A = bit permutation of the workgroup id (memory locality only)")
        A("    s_mul_i32 s13, s13, 0x120000")
        A("    s_bfe_u32 s66, s2, 0x20003")
        A("    s_and_b32 s13, s13, 0x460000", "wg bits 0,1,2 -> byte-address bits 17,18,22")
        A(f"    s_mul_i32 s15, s66, {0x8400 if mp == 1 else 0x8000:#x}", "wg bits 3,4 -> bits 15,16" + (" (and the order of the 1 KiB rows, bits 10,11)" if mp == 1 else ""))
        A("    s_and_b32 s12, s2, 0xe0")
        A("    s_lshl_b32 s12, s12, 14", "wg bits 5,6,7 -> bits 19,20,21")
        A(f"    v_lshlrev_b32 v{AD}, 4, v0")
        A("    s_or_b32 s12, s12, s13")
        A("    s_or_b32 s12, s12, s15")
        A(f"    v_xor_b32 v{AD}, s12, v{AD}", "lane offset in block 0")
        Bq("    s_lshr_b32 s29, s12, 10")
        Bq("    s_and_b32 s29, s29, 0x3e0", "byte offset of the group's channels in g / b")
        if mp == 1: Bq("    s_and_b32 s12, s12, 0xffff8000", "byte base of group A"); x11 = 1
        for k in range(1, 4): Bq(f"    v_add_u32 v{AD+k}, {8192*k}, v{AD}")
    else:
        A("    s_lshl_b32 s12, s2, 15", "byte base of group A")
        xr = x10 or x11 or x12 or x13 or x14
        if xr:
            first = True
            for b, m in ((0, x10), (1, x11), (2, x12), (3, x13), (4, x14)):
                if not m: continue
                if m & (m - 1): A(f"    s_and_b32 s13, s2, {m}"); A("    s_bcnt1_i32_b32 s13, s13"); A("    s_and_b32 s13, s13, 1")
                else: A(f"    s_bfe_u32 s13, s2, {0x10000 + m.bit_length() - 1:#x}")
                if first: A(f"    s_lshl_b32 s66, s13, {b}"); first = False
                else: A(f"    s_lshl_b32 s13, s13, {b}"); A("    s_or_b32 s66, s66, s13")
            A("    s_lshl_b32 s13, s66, 10"); A("    s_or_b32 s13, s13, s12")
            A(f"    v_lshlrev_b32 v{AD}, 4, v0"); A(f"    v_xor_b32 v{AD}, s13, v{AD}", "lane offset in the first block visited")
        else:
            A(f"    v_lshl_add_u32 v{AD}, v0, 4, s12", "lane offset in block 0")
        Bq("    s_and_b32 s29, s2, 31")
        Bq("    s_lshl_b32 s29, s29, 5", "byte offset of the group's channels in g / b")
        for k in range(1, 4): Bq(f"    v_xor_b32 v{AD+k}, {8192*k}, v{AD}")
    if not late:
        for t, c in post: A(t, c)
    if tp == 1: touch()
    A("    s_waitcnt lgkmcnt(0)")
    def load(X, base, i, c=None): A(f"    global_load_dwordx4 v[{X+4*i}:{X+4*i+3}], v{AD+i}, s[{base}:{base+1}]{POL[(ld * 8 if len(ld) == 1 else ld)[i + (4 if X == XB else 0)]]}", c)
    def store(X, base, i, c=None): A(f"    global_store_dwordx4 v{AD+i}, v[{X+4*i}:{X+4*i+3}], s[{base}:{base+1}]{POL[(st * 8 if len(st) == 1 else st)[3 - i + (4 if X == XB else 0)]]}", c)
    load(XA, 4, 0, "A0")
    if late:
        for t, c in post: A(t, c)
    A("    s_load_dwordx8 s[48:55], s[6:7], s29", "gamma, 16 channels")
    A("    s_load_dwordx8 s[56:63], s[8:9], s29", "beta")
    A(f"    s_add_u32 s16, s4, {'s64' if fx else hex(BOFF)}", "x of group B"); A(f"    s_addc_u32 s17, s5, {'s65' if fx else 0}")
    if not two:
        A("    s_add_u32 s14, s4, s12"); A("    s_addc_u32 s15, s5, 0")
        A("    s_load_dwordx2 s[20:21], s[14:15], 0", "first elements of A")
        A("    s_add_u32 s26, s16, s12"); A("    s_addc_u32 s27, s17, 0")
        A("    s_load_dwordx2 s[22:23], s[26:27], 0", "first elements of B")
    if sepgb:
        A(f"    s_add_u32 s13, s29, {32 << sb}")
        A("    s_load_dwordx8 s[64:71], s[6:7], s13", "gamma of B")
        A("    s_load_dwordx8 s[72:79], s[8:9], s13", "beta of B")
    if barA[0] == '1': A("    s_barrier")
    load(XA, 4, 1, "A1")
    A(f"    s_add_u32 s18, s10, {'s64' if fx else hex(BOFF)}", "out of group B"); A(f"    s_addc_u32 s19, s11, {'s65' if fx else 0}")
    A("    s_mov_b32 s28, 0xffff0000")
    A("    s_mov_b32 s24, 0x38800000", "1/16384")
    A("    s_mov_b32 s25, 0x38800000")
    if fast:
        A(f"    v_and_b32 v{LR}, 7, v0"); A(f"    v_lshlrev_b32 v{LR}, 3, v{LR}", "lane l gathers the partial sums of wave l & 7")
    else: A(f"    v_mov_b32 v{LR}, 0")
    if mf:
        A(f"    v_mov_b32 v{ONE}, 0x3f803f80", "bf16 ones")
        for r in range(1, 4): A(f"    v_mov_b32 v{ONE+r}, v{ONE}")
    A(f"    v_lshlrev_b32_e64 v{LW}, 3, s3", "LDS slot of this wave")
    if barA[1] == '1': A("    s_barrier")
    load(XA, 4, 2, "A2")
    if barA[2] == '1': A("    s_barrier")
    load(XA, 4, 3, "A3")
    nB = 0
    while nB < ilv:
        A("    s_barrier"); load(XB, 16, nB, f"B{nB}"); nB += 1
    def kset(src, dst, n):
        if two: return
        A(f"    s_lshl_b32 s14, s{src}, 16"); A(f"    s_and_b32 s15, s{src}, s28"); A(f"    s_lshl_b32 s13, s{src+1}, 16")
        A("    v_mov_b32 v0, s14"); A("    v_mov_b32 v3, s15")
        A("    v_med3_f32 v0, v0, v3, s13", f"K of {n} = median of its first three values")
        A("    s_nop 0")
        A(f"    v_readfirstlane_b32 s{dst}, v0"); A(f"    v_readfirstlane_b32 s{dst+1}, v0")
    def gbs(gsrc, bsrc):
        for j in range(4):
            if x13 or x14:
                A(f"    s_xor_b32 m0, s67, {2*j}"); A("    s_nop 0")
            for base, dst, n in ((gsrc, 32 + 4*j, "gamma"), (bsrc, 34 + 4*j, "beta")):
                if x13 or x14:
                    A(f"    s_movrels_b64 s[14:15], s[{base}:{base+1}]")
                    A(f"    s_lshr_b64 s[14:15], s[14:15], s13")
                else:
                    A(f"    s_lshr_b64 s[14:15], s[{base+2*j}:{base+2*j+1}], s13")
                A(f"    s_lshl_b32 s{dst}, s14, 16", f"{n} of block {j} as an f32 pair"); A(f"    s_lshl_b32 s{dst+1}, s14, 16")
    def gball():
        A("    s_lshr_b32 s13, s3, 1", "block j of this wave is channel 4j + row/2")
        A("    s_lshl_b32 s13, s13, 4")
        if x11 or x12:
            A("    s_and_b32 s14, s66, 6"); A("    s_lshl_b32 s14, s14, 3"); A("    s_xor_b32 s13, s13, s14")
        if x13 or x14: A("    s_lshr_b32 s67, s66, 2"); A("    s_and_b32 s67, s67, 6")
        gbs(48, 56)
    if not dec:
        A("    s_waitcnt lgkmcnt(0)")
        kset(20, 30, 'A'); kset(22, 26, 'B'); gball()
    padleft = [pad]
    pr = lambda r: f"v[{r}:{r+1}]"
    def unpack(X, i):
        x = X + 4*i; f = F + 8*i
        for k in range(4):
            e = []
            for h in range(2):
                if X == XB and padleft[0] > 0: e.append("_e64"); padleft[0] -= 4
                else: e.append("")
            A(f"    v_lshlrev_b32{e[0]} v{f+2*k}, 16, v{x+k}"); A(f"    v_and_b32{e[1]} v{f+2*k+1}, s28, v{x+k}")
    def sub(i, src, c=None):
        f = F + 8*i
        for k in range(4): A(f"    v_pk_add_f32 {pr(f+2*k)}, {pr(f+2*k)}, {src} neg_lo:[0,1] neg_hi:[0,1]", c if k == 0 else None)
    def acc(i, s1, s2):
        f = F + 8*i
        for k in range(4):
            a1 = S1 + 2*(k & 1); a2 = S2 + 2*(k & 1)
            if s1:
                if i == 0 and k >= 2: A(f"    v_pk_add_f32 {pr(a1)}, {pr(f+2*k-4)}, {pr(f+2*k)}", "sum d" if k == 2 else None)
                elif i > 0: A(f"    v_pk_add_f32 {pr(a1)}, {pr(a1)}, {pr(f+2*k)}")
            if s2:
                if i == 0 and k < 2: A(f"    v_pk_mul_f32 {pr(a2)}, {pr(f+2*k)}, {pr(f+2*k)}", "sum d*d" if k == 0 else None)
                else: A(f"    v_pk_fma_f32 {pr(a2)}, {pr(f+2*k)}, {pr(f+2*k)}, {pr(a2)}")
    def stat(X, K, i):
        if mf: A(f"    v_mfma_f32_16x16x32_bf16 v[{S1}:{S1+3}], v[{ONE}:{ONE+3}], v[{X+4*i}:{X+4*i+3}], {'0' if i == 0 else f'v[{S1}:{S1+3}]'}", "column sums of x" if i == 0 else None)
        unpack(X, i)
        if mf: sub(i, f"s[{K}:{K+1}]", "d = x - K" if i == 0 else None); acc(i, 0, 1)
        elif two: acc(i, 1, 0)
        else: sub(i, f"s[{K}:{K+1}]", "d = x - K" if i == 0 else None); acc(i, 1, 1)
    D = "row_mask:0xf bank_mask:0xf"
    steps = [f"row_ror:{sh} {D}" for sh in (8, 4, 2, 1)] + ["row_bcast:15 row_mask:0xa bank_mask:0xf", "row_bcast:31 row_mask:0xc bank_mask:0xf"]
    def xwave(r, off, hook, n):
        A("    s_mov_b32 exec_lo, 0")
        A("    s_mov_b32 exec_hi, 0x80000000", "lane 63 holds the wave total")
        A(f"    ds_write_b64 v{LW}, {pr(r)} offset:{off}")
        A("    s_mov_b64 exec, -1")
        if hook: hook()
        A("    s_waitcnt lgkmcnt(0)")
        A("    s_barrier")
        if fast:
            A(f"    ds_read_b64 {pr(P)}, v{LR} offset:{off}")
            A("    s_waitcnt lgkmcnt(0)")
            A("    s_nop 0")
            for sh in (4, 2, 1):
                A(f"    v_add_f32_dpp v{P}, v{P}, v{P} row_ror:{sh} {D}")
                A(f"    v_add_f32_dpp v{P+1}, v{P+1}, v{P+1} row_ror:{sh} {D}")
                if sh != 1: A("    s_nop 0")
            return
        for j in range(4): A(f"    ds_read_b128 v[{P+4*j}:{P+4*j+3}], v{LR} offset:{off+16*j}")
        add = (lambda a, b: A(f"    v_pk_add_f32 {pr(a)}, {pr(a)}, {pr(b)}")) if n == 2 else (lambda a, b: A(f"    v_add_f32 v{a}, v{a}, v{b}"))
        for j in range(4):
            A(f"    s_waitcnt lgkmcnt({3-j})")
            add(P+4*j, P+4*j+2)
            if j % 2 == 1: add(P+4*j-4, P+4*j)
        add(P, P+8)
    def one(S):
        A(f"    v_pk_add_f32 {pr(S)}, {pr(S)}, {pr(S+2)}")
        A(f"    v_add_f32 v{S}, v{S}, v{S+1}")
        for m in steps:
            A("    s_nop 1"); A(f"    v_add_f32_dpp v{S}, v{S}, v{S} {m}")
    def reduce(K, off, hook=None):
        if two:
            one(S1); xwave(S1, 2*off, hook, 1)
            A(f"    v_mul_f32 v{P}, s24, v{P}", "mean")
            A(f"    v_cvt_pk_bf16_f32 v{T}, 0, v{P}", "mu = bf16(mean), as f32")
            A(f"    v_cvt_pk_bf16_f32 v{T+1}, 0, v{P}")
            for i in range(4): sub(i, pr(T), "d = x - mu" if i == 0 else None); acc(i, 0, 1)
            one(S2); xwave(S2, 2*off + 64, None, 1)
            A(f"    v_mul_f32 v{P}, s24, v{P}", "var")
        elif mf:
            Q = S1 + 1
            A(f"    v_pk_add_f32 {pr(S2)}, {pr(S2)}, {pr(S2+2)}")
            A(f"    v_add_f32 v{Q}, v{S2}, v{S2+1}")
            for m in steps[:4]:
                A(f"    v_add_f32_dpp v{S1}, v{S1}, v{S1} {m}"); A("    s_nop 0"); A(f"    v_add_f32_dpp v{Q}, v{Q}, v{Q} {m}")
            for m in steps[4:]:
                A("    s_nop 1"); A(f"    v_add_f32_dpp v{Q}, v{Q}, v{Q} {m}")
            xwave(S1, off, hook, 2)
            A(f"    v_pk_mul_f32 {pr(P)}, {pr(P)}, s[24:25]", "mean, E[d*d]")
            A(f"    v_subrev_f32 v{T+1}, s{K}, v{P}", "mean - K")
            A(f"    v_cvt_pk_bf16_f32 v{T}, 0, v{P}", "mu = bf16(mean), as f32")
            A(f"    v_fma_f32 v{P+1}, -v{T+1}, v{T+1}, v{P+1}", "variance about the mean")
            A(f"    v_sub_f32 v{P}, v{P}, v{T}", "mean - mu")
            A(f"    v_max_f32 v{P+1}, 0, v{P+1}")
            A(f"    v_subrev_f32 v{MU}, s{K}, v{T}", "mu - K")
            A(f"    v_fma_f32 v{P}, v{P}, v{P}, v{P+1}", "E[(x - mu)^2]")
        else:
            Q = S1 + 1
            A(f"    v_pk_add_f32 {pr(S1)}, {pr(S1)}, {pr(S1+2)}")
            A(f"    v_pk_add_f32 {pr(S2)}, {pr(S2)}, {pr(S2+2)}")
            A(f"    v_add_f32 v{S1}, v{S1}, v{S1+1}")
            A(f"    v_add_f32 v{Q}, v{S2}, v{S2+1}")
            for m in steps:
                A("    s_nop 0")
                A(f"    v_add_f32_dpp v{S1}, v{S1}, v{S1} {m}")
                A(f"    v_add_f32_dpp v{Q}, v{Q}, v{Q} {m}")
            xwave(S1, off, hook, 2)
            A(f"    v_pk_mul_f32 {pr(P)}, {pr(P)}, s[24:25]", "E[d] = mean - K, E[d*d]")
            A(f"    v_add_f32 v{T}, s{K}, v{P}", "mean")
            A(f"    v_fma_f32 v{P+1}, -v{P}, v{P}, v{P+1}", "variance about the mean")
            A(f"    v_cvt_pk_bf16_f32 v{T}, 0, v{T}", "mu = bf16(mean), as f32")
            A(f"    v_max_f32 v{P+1}, 0, v{P+1}")
            A(f"    v_subrev_f32 v{MU}, s{K}, v{T}", "mu - K")
            A(f"    v_sub_f32 v{P}, v{P}, v{MU}", "mean - mu")
            A(f"    v_fma_f32 v{P}, v{P}, v{P}, v{P+1}", "E[(x - mu)^2]")
        A(f"    v_cvt_pk_bf16_f32 v{P}, 0, v{P}")
        A(f"    v_add_f32 v{P}, 0x3727c5ac, v{P}", "+ 1e-5")
        A(f"    v_cvt_pk_bf16_f32 v{P}, 0, v{P}")
        A(f"    v_sqrt_f32 v{P}, v{P}")
        A(f"    v_mov_b32 v{MU+1}, v{MU}" if not two else "    s_nop 0")
        A(f"    v_cvt_pk_bf16_f32 v{P}, 0, v{P}", "sd")
        A(f"    v_rcp_f32 v{R}, v{P}")
        A(f"    v_rcp_f32 v{R+1}, v{P}")
        A("    s_nop 0")
    order = [3, 2, 1, 0]
    def outp(X, base):
        for i in order:
            f = F + 8*i; o = X + 4*i
            A(f"    v_pk_mul_f32 {pr(SC)}, {pr(R)}, s[{32+4*i}:{33+4*i}]", "scale = gamma / sd")
            if two:
                for k in range(4): A(f"    v_pk_fma_f32 {pr(f+2*k)}, {pr(f+2*k)}, {pr(SC)}, s[{34+4*i}:{35+4*i}]")
            else:
                A(f"    v_pk_fma_f32 {pr(SH)}, {pr(MU)}, {pr(SC)}, s[{34+4*i}:{35+4*i}] neg_lo:[1,0,0] neg_hi:[1,0,0]", "shift = beta - (mu - K) * scale")
                for k in range(4): A(f"    v_pk_fma_f32 {pr(f+2*k)}, {pr(f+2*k)}, {pr(SC)}, {pr(SH)}")
            for k in range(4): A(f"    v_cvt_pk_bf16_f32 v{o+k}, v{f+2*k}, v{f+2*k+1}")
            if base: store(X, base, i)
    A("    ; ---------------- group A: statistics")
    for i in range(NL):
        A(f"    s_waitcnt vmcnt({NL-1-i+nB})", f"A{i} landed")
        if nB < NL: load(XB, 16, nB, f"B{nB}"); nB += 1
        if dec and i == 0: A("    s_waitcnt lgkmcnt(0)"); kset(20, 30, 'A')
        stat(XA, 30, i)
        if dec and i == 1: kset(22, 26, 'B')
        if dec and i == 2: gball()
    reduce(30, 0)
    A("    ; ---------------- group A: outputs, packed into A's raw registers")
    if sched == 'e': outp(XA, 10); n = NL; sc = [0] * 6
    else: sc = [int(c) for c in sched.ljust(6, '0')]; assert sum(sc) == 4; outp(XA, None); n = 0
    pend = list(order)
    def rel(c):
        nonlocal n
        for _ in range(c):
            i = pend.pop(0); store(XA, 10, i, f"out A{i}"); n += 1
    rel(sc[0])
    if sepgb: gbs(64, 72)
    A("    ; ---------------- group B: statistics; A's stores go out behind B's last loads")
    for i in range(NL):
        A(f"    s_waitcnt vmcnt({NL-1-i+n})", f"B{i} landed"); rel(sc[i+1]); stat(XB, 26, i)
    reduce(26, 64, lambda: rel(sc[5]))
    outp(XB, 18)
    A("L_end:")
    A("    s_endpgm")
    return L, NV

def gen(st='A', sched='00022', barA='011', ilv=1, vg=136, skew=0, ld='-', two=0, fast=0, pad=0, mf=0, gx='', fx=0, x12=0, x13=0, x14=0, x10=0, x11=0, mp=0, late=0, tp=0, dec=0):
    nt = 2
    if pad < 0:
        for p_ in range(0, 97, 4):
            t = gen(st, sched, barA, ilv, vg, skew, ld, two, fast, p_, mf, gx, fx, x12, x13, x14, x10, x11, mp, late, tp, dec).split("\n")
            if 'vmcnt' in t[t.index("L_s2:") + 1]: return "\n".join(t)
        pad = 0
    L, NV = body(st, sched, barA, ilv, nt, skew, ld, two, fast, pad, mf, gx, fx, x12, x13, x14, x10, x11, mp, late, tp, dec)
    for k in range(1, nt + 1):
        off = sizes(L)
        cand = [n for n in range(len(L)) if k * WIN <= off[n] + 4 < k * WIN + 56 and not L[n].strip().startswith(';') and not L[n].endswith(':')]
        pref = [n for n in cand if 's_waitcnt' in L[n]] or [n for n in cand if 's_nop' in L[n]]
        n = (pref or cand)[0]
        L[n:n] = [f"    s_branch L_s{k}", f"L_t{k}:", f"{'    s_branch L_back':<96}; I-cache visit {k} ends here", f"L_s{k}:"]
    assert sizes(L)[-1] + 4 <= 3 * WIN
    H = [HEADER.rstrip(), f"; @launch grid=(256,1,1) block=(512,1,1) lds={256 if two else 128}", '.amdgcn_target "amdgcn-amd-amdhsa--gfx950"',
         ".text", f".globl {NAME}", ".p2align 8", f".type {NAME},@function", f"{NAME}:"]
    nv = max(vg, (NV + 7) // 8 * 8)
    E = ['.section .rodata,"a"', ".p2align 6", f".amdhsa_kernel {NAME}", f"  .amdhsa_next_free_vgpr {nv}", "  .amdhsa_next_free_sgpr 72",
         f"  .amdhsa_accum_offset {nv}", "  .amdhsa_group_segment_fixed_size 0", "  .amdhsa_kernarg_size 48", "  .amdhsa_user_sgpr_count 2",
         "  .amdhsa_user_sgpr_kernarg_segment_ptr 1", "  .amdhsa_system_sgpr_workgroup_id_x 1", "  .amdhsa_float_denorm_mode_32 3", ".end_amdhsa_kernel"]
    return "\n".join(H + L + E) + "\n"

if __name__ == "__main__":
    args = sys.argv[1:]; out = args[args.index('-o') + 1]; kw = {}
    for a in args:
        if '=' in a:
            k, v = a.split('=')
            kw[k] = v if k in ('st', 'sched', 'barA', 'ld', 'gx') else int(v)
    open(out, 'w').write(gen(**kw))
```

```python
import sys
from gen5 import sizes, POL, WIN, NAME

HEADER = """; Kernarg layout for this problem (48 bytes, ptrs only, base s[0:1]):
;   offset   0: d_in[0] x  shape=(16, 512, 32, 32) dtype=bfloat16 strides=(1048576, 2048, 64, 2) contiguous=True
;   offset   8: d_in[1] g  shape=(512,) dtype=bfloat16 strides=(2,) contiguous=True
;   offset  16: d_in[2] b  shape=(512,) dtype=bfloat16 strides=(2,) contiguous=True
;
; channels, batch + 8).  Every byte of x is read once, into registers: a wave holds one 1 KiB row of
; Pipeline: the loads A0..A3, B0..B3 form one sequential stream per CU (the barriers keep the waves
; in step); A's outputs are stored while the last blocks of B arrive, B's outputs follow.
; Statistics: shifted-data algorithm.  d = x - K with K one of the group's own values; mean and
"""

def body(st, sched, barA, ilv, ntouch, skew, ld, two, fast, pad, mf, gx, fx, x12, x13, x14, x10, x11, mp, late, tp, dec, pf, diag, vgb, lp, fwd):
    W, NL = 8, 4
    L = []
    def A(s, c=None): L.append(s if c is None else f"{s:<96}; {c}")
    LR, LW = 1, 2
    S1, S2 = 4, 8
    AD = 12
    T = 16
    P = 20
    XA = 36; XB = 52; F = 68
    NV = F + 32
    ONE = NV
    if mf: NV += 4
    R, MU, SC, SH = 4, 6, 8, 10
    if skew >= 100:
        A("    s_getreg_b32 s13, hwreg(HW_REG_XCC_ID)")
        for b, c in enumerate(reversed(str(skew)[-3:])):
            if int(c):
                A(f"    s_bitcmp1_b32 s13, {b}"); A(f"    s_cbranch_scc0 L_nsk{b}"); A(f"    s_sleep {2*int(c)}"); A(f"L_nsk{b}:")
    elif skew:
        A("    s_getreg_b32 s13, hwreg(HW_REG_XCC_ID)"); A("    s_and_b32 s13, s13, 4")
        A("    s_cbranch_scc%d L_nsk" % (0 if skew > 0 else 1)); A(f"    s_sleep {abs(skew)}"); A("L_nsk:")
    A("    s_load_dwordx8 s[4:11], s[0:1], 0", "x, g, b, out")
    A("    v_readfirstlane_b32 s3, v0")
    A("    s_cmp_ge_u32 s2, 256")
    A("    s_cbranch_scc1 L_end", "over-launched workgroups leave")
    A("    s_lshr_b32 s3, s3, 6", "wave id")
    def touch():
        A("    ; An instruction-cache miss brings in 1088 bytes.  While the kernarg load is in flight the two")
        A("    ; youngest waves visit the later windows of this code, so nobody misses behind the data stream.")
        for k in range(ntouch, 0, -1):
            A(f"    s_cmp_eq_u32 s3, {W - 1 - (ntouch - k)}")
            A(f"    s_cbranch_scc1 L_t{k}")
        A("L_back:")
    if tp == 0: touch()
    sb = 8
    if gx:
        if len(gx) == 8: gx = gx + 'S'
        assert sorted(gx) == list('01234567S')
        sb = gx.index('S')
        d = 0; first = True
        while d < 9:
            if gx[d] == 'S': d += 1; continue
            n = 1
            while d + n < 9 and gx[d+n] != 'S' and int(gx[d+n]) == int(gx[d]) + n: n += 1
            if first:
                A(f"    s_bfe_u32 s12, s2, {(n << 16) + int(gx[d]):#x}", "group A = bit permutation of the workgroup id (locality only)")
                if d: A(f"    s_lshl_b32 s12, s12, {d}")
                first = False
            else:
                A(f"    s_bfe_u32 s13, s2, {(n << 16) + int(gx[d]):#x}")
                A(f"    s_lshl_b32 s13, s13, {d}"); A("    s_or_b32 s12, s12, s13")
            d += n
        A("    s_mov_b32 s2, s12")
    if fx:
        assert sb == 8
        A(f"    s_and_b32 s13, s2, {fx}"); A("    s_bcnt1_i32_b32 s13, s13"); A("    s_and_b32 s13, s13, 1")
        A("    s_cselect_b32 s64, 0xff800000, 0x800000".replace("0xff800000, 0x800000", "-1, 0").replace("s64", "s65"))
        A("    s_lshl_b32 s13, s13, 8"); A("    s_or_b32 s2, s2, s13")
        A("    s_and_b32 s64, s65, 0xff000000"); A("    s_or_b32 s64, s64, 0x800000")
    BOFF = 1 << (15 + sb)
    sepgb = sb < 5
    post = []
    Bq = lambda t, c=None: post.append((t, c))
    if mp:
        A("    s_and_b32 s13, s2, 7", "group A = bit permutation of the workgroup id (memory locality only)")
        A("    s_mul_i32 s13, s13, 0x120000")
        A("    s_bfe_u32 s66, s2, 0x20003")
        A("    s_and_b32 s13, s13, 0x460000", "wg bits 0,1,2 -> byte-address bits 17,18,22")
        A(f"    s_mul_i32 s15, s66, {0x8400 if mp == 1 else 0x8000:#x}", "wg bits 3,4 -> bits 15,16" + (" (and the order of the 1 KiB rows, bits 10,11)" if mp == 1 else ""))
        A("    s_and_b32 s12, s2, 0xe0")
        A("    s_lshl_b32 s12, s12, 14", "wg bits 5,6,7 -> bits 19,20,21")
        if lp:
            bits = [int(c, 16) for c in lp]; assert sorted(bits) == list(range(4, 13))
            k = 0; first = True
            while k < 9:
                n = 1
                while k + n < 9 and bits[k+n] == bits[k] + n: n += 1
                A(f"    v_bfe_u32 v3, v0, {k}, {n}")
                A(f"    v_lshlrev_b32 v{AD}, {bits[k]}, v3" if first else f"    v_lshl_or_b32 v{AD}, v3, {bits[k]}, v{AD}")
                first = False; k += n
        else: A(f"    v_lshlrev_b32 v{AD}, 4, v0")
        A("    s_or_b32 s12, s12, s13")
        A("    s_or_b32 s12, s12, s15")
        A(f"    v_xor_b32 v{AD}, s12, v{AD}", "lane offset in block 0")
        Bq("    s_lshr_b32 s29, s12, 10")
        Bq("    s_and_b32 s29, s29, 0x3e0", "byte offset of the group's channels in g / b")
        if mp == 1: Bq("    s_and_b32 s12, s12, 0xffff8000", "byte base of group A"); x11 = 1
        for k in range(1, 4): Bq(f"    v_add_u32 v{AD+k}, {8192*k}, v{AD}")
    else:
        A("    s_lshl_b32 s12, s2, 15", "byte base of group A")
        xr = x10 or x11 or x12 or x13 or x14
        if xr:
            first = True
            for b, m in ((0, x10), (1, x11), (2, x12), (3, x13), (4, x14)):
                if not m: continue
                if m & (m - 1): A(f"    s_and_b32 s13, s2, {m}"); A("    s_bcnt1_i32_b32 s13, s13"); A("    s_and_b32 s13, s13, 1")
                else: A(f"    s_bfe_u32 s13, s2, {0x10000 + m.bit_length() - 1:#x}")
                if first: A(f"    s_lshl_b32 s66, s13, {b}"); first = False
                else: A(f"    s_lshl_b32 s13, s13, {b}"); A("    s_or_b32 s66, s66, s13")
            A("    s_lshl_b32 s13, s66, 10"); A("    s_or_b32 s13, s13, s12")
            A(f"    v_lshlrev_b32 v{AD}, 4, v0"); A(f"    v_xor_b32 v{AD}, s13, v{AD}", "lane offset in the first block visited")
        else:
            A(f"    v_lshl_add_u32 v{AD}, v0, 4, s12", "lane offset in block 0")
        Bq("    s_and_b32 s29, s2, 31")
        Bq("    s_lshl_b32 s29, s29, 5", "byte offset of the group's channels in g / b")
        for k in range(1, 4): Bq(f"    v_xor_b32 v{AD+k}, {8192*k}, v{AD}")
    if not late:
        for t, c in post: A(t, c)
    if tp == 1: touch()
    A("    s_waitcnt lgkmcnt(0)")
    def load(X, base, i, c=None): A(f"    global_load_dwordx4 v[{X+4*i}:{X+4*i+3}], v{AD+i}, s[{base}:{base+1}]{POL[(ld * 8 if len(ld) == 1 else ld)[i + (4 if X == XB else 0)]]}", c)
    def store(X, base, i, c=None): A(f"    global_store_dwordx4 v{AD+i}, v[{X+4*i}:{X+4*i+3}], s[{base}:{base+1}]{POL[(st * 8 if len(st) == 1 else st)[3 - i + (4 if X == XB else 0)]]}", c)
    load(XA, 4, 0, "A0")
    if late:
        for t, c in post: A(t, c)
    def vgbload():
        A(f"    global_load_ushort v{T+2}, v3, s[6:7]", "gamma of the wave's four channels (lane & 3 = block)")
        A(f"    global_load_ushort v{T+3}, v3, s[8:9]", "beta likewise")
    if vgb:
        A(f"    v_bfe_u32 v3, v{AD}, 10, 3"); A("    v_and_b32 v3, 6, v3", "2 * (row / 2)")
        A(f"    v_and_b32 v{T}, 3, v0"); A(f"    v_lshl_or_b32 v3, v{T}, 3, v3"); A("    v_or_b32 v3, s29, v3")
        if vgb == 1: vgbload()
    else:
        A("    s_load_dwordx8 s[48:55], s[6:7], s29", "gamma, 16 channels")
        A("    s_load_dwordx8 s[56:63], s[8:9], s29", "beta")
    A(f"    s_add_u32 s16, s4, {'s64' if fx else hex(BOFF)}", "x of group B"); A(f"    s_addc_u32 s17, s5, {'s65' if fx else 0}")
    if not two:
        A("    s_add_u32 s14, s4, s12"); A("    s_addc_u32 s15, s5, 0")
        A("    s_load_dwordx2 s[20:21], s[14:15], 0", "first elements of A")
        A("    s_add_u32 s26, s16, s12"); A("    s_addc_u32 s27, s17, 0")
        A("    s_load_dwordx2 s[22:23], s[26:27], 0", "first elements of B")
    if sepgb:
        A(f"    s_add_u32 s13, s29, {32 << sb}")
        A("    s_load_dwordx8 s[64:71], s[6:7], s13", "gamma of B")
        A("    s_load_dwordx8 s[72:79], s[8:9], s13", "beta of B")
    if barA[0] == '1': A("    s_barrier")
    load(XA, 4, 1, "A1")
    A(f"    s_add_u32 s18, s10, {'s64' if fx else hex(BOFF)}", "out of group B"); A(f"    s_addc_u32 s19, s11, {'s65' if fx else 0}")
    if pf & 1:
        A("    s_add_u32 s30, s10, s12"); A("    s_addc_u32 s31, s11, 0")
        A("    s_load_dword s68, s[30:31], 0", "touch the output pages early (address translation only, value unused)")
        A("    s_add_u32 s70, s18, s12"); A("    s_addc_u32 s71, s19, 0")
        A("    s_load_dword s69, s[70:71], 0")
    A("    s_mov_b32 s28, 0xffff0000")
    A("    s_mov_b32 s24, 0x38800000", "1/16384")
    A("    s_mov_b32 s25, 0x38800000")
    if fast:
        A(f"    v_and_b32 v{LR}, 7, v0"); A(f"    v_lshlrev_b32 v{LR}, 3, v{LR}", "lane l gathers the partial sums of wave l & 7")
    else: A(f"    v_mov_b32 v{LR}, 0")
    if mf:
        A(f"    v_mov_b32 v{ONE}, 0x3f803f80", "bf16 ones")
        for r in range(1, 4): A(f"    v_mov_b32 v{ONE+r}, v{ONE}")
    A(f"    v_lshlrev_b32_e64 v{LW}, 3, s3", "LDS slot of this wave")
    if barA[1] == '1': A("    s_barrier")
    load(XA, 4, 2, "A2")
    if barA[2] == '1': A("    s_barrier")
    load(XA, 4, 3, "A3")
    npf = 0
    if vgb == 2: vgbload(); npf = 2
    if pf & 2:
        A("    v_mov_b32 v3, s12")
        A(f"    global_load_dword v{T+2}, v3, s[10:11]", "touch the output pages early (value unused)")
        A(f"    global_load_dword v{T+3}, v3, s[18:19]"); npf = 2
    nB = 0
    while nB < ilv:
        A("    s_barrier"); load(XB, 16, nB, f"B{nB}"); nB += 1
    def kset(src, dst, n):
        if two: return
        A(f"    s_lshl_b32 s14, s{src}, 16"); A(f"    s_and_b32 s15, s{src}, s28"); A(f"    s_lshl_b32 s13, s{src+1}, 16")
        A("    v_mov_b32 v0, s14"); A("    v_mov_b32 v3, s15")
        A("    v_med3_f32 v0, v0, v3, s13", f"K of {n} = median of its first three values")
        A("    s_nop 0")
        A(f"    v_readfirstlane_b32 s{dst}, v0"); A(f"    v_readfirstlane_b32 s{dst+1}, v0")
    def gbs(gsrc, bsrc):
        for j in range(4):
            if x13 or x14:
                A(f"    s_xor_b32 m0, s67, {2*j}"); A("    s_nop 0")
            for base, dst, n in ((gsrc, 32 + 4*j, "gamma"), (bsrc, 34 + 4*j, "beta")):
                if x13 or x14:
                    A(f"    s_movrels_b64 s[14:15], s[{base}:{base+1}]")
                    A(f"    s_lshr_b64 s[14:15], s[14:15], s13")
                else:
                    A(f"    s_lshr_b64 s[14:15], s[{base+2*j}:{base+2*j+1}], s13")
                A(f"    s_lshl_b32 s{dst}, s14, 16", f"{n} of block {j} as an f32 pair"); A(f"    s_lshl_b32 s{dst+1}, s14, 16")
    def vgball():
        A(f"    v_lshlrev_b32 v{T+2}, 16, v{T+2}"); A(f"    v_lshlrev_b32 v{T+3}, 16, v{T+3}")
        A("    s_nop 0")
        for j in range(4):
            for r, dst, n in ((T+2, 32 + 4*j, "gamma"), (T+3, 34 + 4*j, "beta")):
                A(f"    v_readlane_b32 s{dst}, v{r}, {j}", f"{n} of block {j} as an f32 pair"); A(f"    v_readlane_b32 s{dst+1}, v{r}, {j}")
    def gball():
        if vgb: return
        A("    s_lshr_b32 s13, s3, 1", "block j of this wave is channel 4j + row/2")
        A("    s_lshl_b32 s13, s13, 4")
        if x11 or x12:
            A("    s_and_b32 s14, s66, 6"); A("    s_lshl_b32 s14, s14, 3"); A("    s_xor_b32 s13, s13, s14")
        if x13 or x14: A("    s_lshr_b32 s67, s66, 2"); A("    s_and_b32 s67, s67, 6")
        gbs(48, 56)
    if not dec:
        A("    s_waitcnt lgkmcnt(0)")
        kset(20, 30, 'A'); kset(22, 26, 'B'); gball()
    padleft = [pad]
    pr = lambda r: f"v[{r}:{r+1}]"
    def unpack(X, i):
        x = X + 4*i; f = F + 8*i
        for k in range(4):
            e = []
            for h in range(2):
                if X == XB and padleft[0] > 0: e.append("_e64"); padleft[0] -= 4
                else: e.append("")
            A(f"    v_lshlrev_b32{e[0]} v{f+2*k}, 16, v{x+k}"); A(f"    v_and_b32{e[1]} v{f+2*k+1}, s28, v{x+k}")
    def sub(i, src, c=None):
        f = F + 8*i
        for k in range(4): A(f"    v_pk_add_f32 {pr(f+2*k)}, {pr(f+2*k)}, {src} neg_lo:[0,1] neg_hi:[0,1]", c if k == 0 else None)
    def acc(i, s1, s2):
        f = F + 8*i
        for k in range(4):
            a1 = S1 + 2*(k & 1); a2 = S2 + 2*(k & 1)
            if s1:
                if i == 0 and k >= 2: A(f"    v_pk_add_f32 {pr(a1)}, {pr(f+2*k-4)}, {pr(f+2*k)}", "sum d" if k == 2 else None)
                elif i > 0: A(f"    v_pk_add_f32 {pr(a1)}, {pr(a1)}, {pr(f+2*k)}")
            if s2:
                if i == 0 and k < 2: A(f"    v_pk_mul_f32 {pr(a2)}, {pr(f+2*k)}, {pr(f+2*k)}", "sum d*d" if k == 0 else None)
                else: A(f"    v_pk_fma_f32 {pr(a2)}, {pr(f+2*k)}, {pr(f+2*k)}, {pr(a2)}")
    def stat(X, K, i):
        if mf: A(f"    v_mfma_f32_16x16x32_bf16 v[{S1}:{S1+3}], v[{ONE}:{ONE+3}], v[{X+4*i}:{X+4*i+3}], {'0' if i == 0 else f'v[{S1}:{S1+3}]'}", "column sums of x" if i == 0 else None)
        unpack(X, i)
        if mf: sub(i, f"s[{K}:{K+1}]", "d = x - K" if i == 0 else None); acc(i, 0, 1)
        elif two: acc(i, 1, 0)
        else: sub(i, f"s[{K}:{K+1}]", "d = x - K" if i == 0 else None); acc(i, 1, 1)
    D = "row_mask:0xf bank_mask:0xf"
    steps = [f"row_ror:{sh} {D}" for sh in (8, 4, 2, 1)] + ["row_bcast:15 row_mask:0xa bank_mask:0xf", "row_bcast:31 row_mask:0xc bank_mask:0xf"]
    def xwave(r, off, hook, n):
        A("    s_mov_b32 exec_lo, 0")
        A("    s_mov_b32 exec_hi, 0x80000000", "lane 63 holds the wave total")
        A(f"    ds_write_b64 v{LW}, {pr(r)} offset:{off}")
        A("    s_mov_b64 exec, -1")
        if hook: hook()
        A("    s_waitcnt lgkmcnt(0)")
        A("    s_barrier")
        if fast:
            A(f"    ds_read_b64 {pr(P)}, v{LR} offset:{off}")
            A("    s_waitcnt lgkmcnt(0)")
            A("    s_nop 0")
            for sh in (4, 2, 1):
                A(f"    v_add_f32_dpp v{P}, v{P}, v{P} row_ror:{sh} {D}")
                A(f"    v_add_f32_dpp v{P+1}, v{P+1}, v{P+1} row_ror:{sh} {D}")
                if sh != 1: A("    s_nop 0")
            return
        for j in range(4): A(f"    ds_read_b128 v[{P+4*j}:{P+4*j+3}], v{LR} offset:{off+16*j}")
        add = (lambda a, b: A(f"    v_pk_add_f32 {pr(a)}, {pr(a)}, {pr(b)}")) if n == 2 else (lambda a, b: A(f"    v_add_f32 v{a}, v{a}, v{b}"))
        for j in range(4):
            A(f"    s_waitcnt lgkmcnt({3-j})")
            add(P+4*j, P+4*j+2)
            if j % 2 == 1: add(P+4*j-4, P+4*j)
        add(P, P+8)
    def one(S):
        A(f"    v_pk_add_f32 {pr(S)}, {pr(S)}, {pr(S+2)}")
        A(f"    v_add_f32 v{S}, v{S}, v{S+1}")
        for m in steps:
            A("    s_nop 1"); A(f"    v_add_f32_dpp v{S}, v{S}, v{S} {m}")
    def reduce(K, off, hook=None):
        if two:
            one(S1); xwave(S1, 2*off, hook, 1)
            A(f"    v_mul_f32 v{P}, s24, v{P}", "mean")
            A(f"    v_cvt_pk_bf16_f32 v{T}, 0, v{P}", "mu = bf16(mean), as f32")
            A(f"    v_cvt_pk_bf16_f32 v{T+1}, 0, v{P}")
            for i in range(4): sub(i, pr(T), "d = x - mu" if i == 0 else None); acc(i, 0, 1)
            one(S2); xwave(S2, 2*off + 64, None, 1)
            A(f"    v_mul_f32 v{P}, s24, v{P}", "var")
        elif mf:
            Q = S1 + 1
            A(f"    v_pk_add_f32 {pr(S2)}, {pr(S2)}, {pr(S2+2)}")
            A(f"    v_add_f32 v{Q}, v{S2}, v{S2+1}")
            for m in steps[:4]:
                A(f"    v_add_f32_dpp v{S1}, v{S1}, v{S1} {m}"); A("    s_nop 0"); A(f"    v_add_f32_dpp v{Q}, v{Q}, v{Q} {m}")
            for m in steps[4:]:
                A("    s_nop 1"); A(f"    v_add_f32_dpp v{Q}, v{Q}, v{Q} {m}")
            xwave(S1, off, hook, 2)
            A(f"    v_pk_mul_f32 {pr(P)}, {pr(P)}, s[24:25]", "mean, E[d*d]")
            A(f"    v_subrev_f32 v{T+1}, s{K}, v{P}", "mean - K")
            A(f"    v_cvt_pk_bf16_f32 v{T}, 0, v{P}", "mu = bf16(mean), as f32")
            A(f"    v_fma_f32 v{P+1}, -v{T+1}, v{T+1}, v{P+1}", "variance about the mean")
            A(f"    v_sub_f32 v{P}, v{P}, v{T}", "mean - mu")
            A(f"    v_max_f32 v{P+1}, 0, v{P+1}")
            A(f"    v_subrev_f32 v{MU}, s{K}, v{T}", "mu - K")
            A(f"    v_fma_f32 v{P}, v{P}, v{P}, v{P+1}", "E[(x - mu)^2]")
        else:
            Q = S1 + 1
            A(f"    v_pk_add_f32 {pr(S1)}, {pr(S1)}, {pr(S1+2)}")
            A(f"    v_pk_add_f32 {pr(S2)}, {pr(S2)}, {pr(S2+2)}")
            A(f"    v_add_f32 v{S1}, v{S1}, v{S1+1}")
            A(f"    v_add_f32 v{Q}, v{S2}, v{S2+1}")
            for m in steps:
                A("    s_nop 0")
                A(f"    v_add_f32_dpp v{S1}, v{S1}, v{S1} {m}")
                A(f"    v_add_f32_dpp v{Q}, v{Q}, v{Q} {m}")
            xwave(S1, off, hook, 2)
            A(f"    v_pk_mul_f32 {pr(P)}, {pr(P)}, s[24:25]", "E[d] = mean - K, E[d*d]")
            A(f"    v_add_f32 v{T}, s{K}, v{P}", "mean")
            A(f"    v_fma_f32 v{P+1}, -v{P}, v{P}, v{P+1}", "variance about the mean")
            A(f"    v_cvt_pk_bf16_f32 v{T}, 0, v{T}", "mu = bf16(mean), as f32")
            A(f"    v_max_f32 v{P+1}, 0, v{P+1}")
            A(f"    v_subrev_f32 v{MU}, s{K}, v{T}", "mu - K")
            A(f"    v_sub_f32 v{P}, v{P}, v{MU}", "mean - mu")
            A(f"    v_fma_f32 v{P}, v{P}, v{P}, v{P+1}", "E[(x - mu)^2]")
        A(f"    v_cvt_pk_bf16_f32 v{P}, 0, v{P}")
        A(f"    v_add_f32 v{P}, 0x3727c5ac, v{P}", "+ 1e-5")
        A(f"    v_cvt_pk_bf16_f32 v{P}, 0, v{P}")
        A(f"    v_sqrt_f32 v{P}, v{P}")
        A(f"    v_mov_b32 v{MU+1}, v{MU}" if not two else "    s_nop 0")
        A(f"    v_cvt_pk_bf16_f32 v{P}, 0, v{P}", "sd")
        A(f"    v_rcp_f32 v{R}, v{P}")
        A(f"    v_rcp_f32 v{R+1}, v{P}")
        A("    s_nop 0")
    order = [0, 1, 2, 3] if fwd == 1 else [2, 3, 0, 1] if fwd == 2 else [1, 0, 3, 2] if fwd == 3 else [3, 2, 1, 0]
    def outp(X, base):
        for i in order:
            f = F + 8*i; o = X + 4*i
            A(f"    v_pk_mul_f32 {pr(SC)}, {pr(R)}, s[{32+4*i}:{33+4*i}]", "scale = gamma / sd")
            if two:
                for k in range(4): A(f"    v_pk_fma_f32 {pr(f+2*k)}, {pr(f+2*k)}, {pr(SC)}, s[{34+4*i}:{35+4*i}]")
            else:
                A(f"    v_pk_fma_f32 {pr(SH)}, {pr(MU)}, {pr(SC)}, s[{34+4*i}:{35+4*i}] neg_lo:[1,0,0] neg_hi:[1,0,0]", "shift = beta - (mu - K) * scale")
                for k in range(4): A(f"    v_pk_fma_f32 {pr(f+2*k)}, {pr(f+2*k)}, {pr(SC)}, {pr(SH)}")
            for k in range(4): A(f"    v_cvt_pk_bf16_f32 v{o+k}, v{f+2*k}, v{f+2*k+1}")
            if base: store(X, base, i)
    A("    ; ---------------- group A: statistics")
    for i in range(NL):
        A(f"    s_waitcnt vmcnt({NL-1-i+nB+npf+(2 if vgb == 1 and i == 0 else 0)})", f"A{i} landed")
        if nB < NL: load(XB, 16, nB, f"B{nB}"); nB += 1
        if dec and i == 0: A("    s_waitcnt lgkmcnt(0)"); kset(20, 30, 'A')
        stat(XA, 30, i)
        if dec and i == 1: kset(22, 26, 'B')
        if dec and i == 2: gball()
    def hookA():
        if vgb == 2: A(f"    s_waitcnt vmcnt({NL})")
        if vgb: vgball()
    reduce(30, 0, hookA)
    A("    ; ---------------- group A: outputs, packed into A's raw registers")
    if sched == 'e': outp(XA, 10); n = NL; sc = [0] * 6
    else: sc = [int(c) for c in sched.ljust(6, '0')]; assert sum(sc) == 4; outp(XA, None); n = 0
    pend = list(order)
    def rel(c):
        nonlocal n
        for _ in range(c):
            i = pend.pop(0); store(XA, 10, i, f"out A{i}"); n += 1
    rel(sc[0])
    if sepgb: gbs(64, 72)
    A("    ; ---------------- group B: statistics; A's stores go out behind B's last loads")
    for i in range(NL):
        A(f"    s_waitcnt vmcnt({NL-1-i+n})", f"B{i} landed"); rel(sc[i+1]); stat(XB, 26, i)
    reduce(26, 64, lambda: rel(sc[5]))
    outp(XB, 18)
    A("L_end:")
    A("    s_endpgm")
    if diag & 1: L = [("    s_mov_b64 s[20:21], 0" if 'first elements of A' in l else "    s_mov_b64 s[22:23], 0" if 'first elements of B' in l else l) for l in L]
    if diag & 2: L = [l for l in L if 'gamma, 16' not in l and not l.rstrip().endswith('; beta')]
    if diag & 8:
        i0 = [n for n, l in enumerate(L) if 'gamma, 16' in l][0]
        L = L[:i0] + ["    s_mov_b32 s48, 0x3f803f80"] + [f"    s_mov_b32 s{r}, s48" for r in range(49, 64)] + L[i0+2:]
    if diag & 4:
        i0 = [n for n, l in enumerate(L) if l.rstrip().endswith('; A0')][0]; i1 = [n for n, l in enumerate(L) if l.rstrip().endswith('; A1')][0]
        L = L[:i0] + L[i0+1:i1] + [L[i0]] + L[i1:]
    return L, NV

def gen(st='A', sched='00022', barA='011', ilv=1, vg=136, skew=0, ld='-', two=0, fast=0, pad=0, mf=0, gx='', fx=0, x12=0, x13=0, x14=0, x10=0, x11=0, mp=0, late=0, tp=0, dec=0, pf=0, diag=0, vgb=0, lp='', fwd=0):
    nt = 2
    if pad < 0:
        for p_ in range(0, 97, 4):
            t = gen(st, sched, barA, ilv, vg, skew, ld, two, fast, p_, mf, gx, fx, x12, x13, x14, x10, x11, mp, late, tp, dec, pf, diag, vgb, lp, fwd).split("\n")
            if 'vmcnt' in t[t.index("L_s2:") + 1]: return "\n".join(t)
        pad = 0
    L, NV = body(st, sched, barA, ilv, nt, skew, ld, two, fast, pad, mf, gx, fx, x12, x13, x14, x10, x11, mp, late, tp, dec, pf, diag, vgb, lp, fwd)
    for k in range(1, nt + 1):
        off = sizes(L)
        cand = [n for n in range(len(L)) if k * WIN <= off[n] + 4 < k * WIN + 56 and not L[n].strip().startswith(';') and not L[n].endswith(':')]
        pref = [n for n in cand if 's_waitcnt' in L[n]] or [n for n in cand if 's_nop' in L[n]]
        n = (pref or cand)[0]
        L[n:n] = [f"    s_branch L_s{k}", f"L_t{k}:", f"{'    s_branch L_back':<96}; I-cache visit {k} ends here", f"L_s{k}:"]
    assert sizes(L)[-1] + 4 <= 3 * WIN
    H = [HEADER.rstrip(), f"; @launch grid=(256,1,1) block=(512,1,1) lds={256 if two else 128}", '.amdgcn_target "amdgcn-amd-amdhsa--gfx950"',
         ".text", f".globl {NAME}", ".p2align 8", f".type {NAME},@function", f"{NAME}:"]
    nv = max(vg, (NV + 7) // 8 * 8)
    E = ['.section .rodata,"a"', ".p2align 6", f".amdhsa_kernel {NAME}", f"  .amdhsa_next_free_vgpr {nv}", "  .amdhsa_next_free_sgpr 72",
         f"  .amdhsa_accum_offset {nv}", "  .amdhsa_group_segment_fixed_size 0", "  .amdhsa_kernarg_size 48", "  .amdhsa_user_sgpr_count 2",
         "  .amdhsa_user_sgpr_kernarg_segment_ptr 1", "  .amdhsa_system_sgpr_workgroup_id_x 1", "  .amdhsa_float_denorm_mode_32 3", ".end_amdhsa_kernel"]
    return "\n".join(H + L + E) + "\n"

if __name__ == "__main__":
    args = sys.argv[1:]; out = args[args.index('-o') + 1]; kw = {}
    for a in args:
        if '=' in a:
            k, v = a.split('=')
            kw[k] = v if k in ('st', 'sched', 'barA', 'ld', 'gx', 'lp') else int(v)
    open(out, 'w').write(gen(**kw))
```
